```python
import torch

def _softmax(x, axis=-1):
    return torch.softmax(x, dim=axis)
def _gelu(x):
    return torch.nn.functional.gelu(x, approximate="tanh")
def _silu(x):
    return torch.nn.functional.silu(x)
def _sigmoid(x):
    return torch.sigmoid(x)
def _layernorm(x, axis=-1, eps=1e-5):
    m = x.mean(dim=axis, keepdim=True)
    v = x.var(dim=axis, keepdim=True, unbiased=False)
    return (x - m) / torch.sqrt(v + eps)
def _scatter_add(tgt, idx, src, axis=0):
    return tgt.clone().index_add_(axis, idx, src)
def _segment_sum(src, seg, n):
    out = torch.zeros((n,) + src.shape[1:], dtype=src.dtype)
    return out.index_add_(0, seg, src)
def _pad(x, pw):
    flat = tuple(v for pair in reversed(pw) for v in pair)
    return torch.nn.functional.pad(x, flat)

kernel_name = 'gated_mix__grouped_kv_mqa__grouped_kv_mqa__prompt'

def setup_inputs():

    _w = (lambda a: (lambda t: t.to(torch.bfloat16) if t.is_floating_point() else t)(torch.as_tensor(a)))
    def _A_setup():
        B, S, D, H = 1, 2048, 640, 32
        Dh = D // H
        return {
            "x": _w((lambda *s: torch.randn(*s, dtype=torch.bfloat16) * 0.05)(B, S, D)),
            "wq": _w((lambda *s: torch.randn(*s, dtype=torch.bfloat16) * 0.8)(D, H * Dh)),
            "wk": _w((lambda *s: torch.randn(*s, dtype=torch.bfloat16) * 0.8)(D, Dh)),
            "wv": _w((lambda *s: torch.randn(*s, dtype=torch.bfloat16) * 0.05)(D, Dh)),
            "wo": _w((lambda *s: torch.randn(*s, dtype=torch.bfloat16) * 0.05)(H * Dh, D)),
        }
    _A_in = _A_setup()

    def _B_setup():
        B, S, D, H = 1, 2048, 640, 32
        Dh = D // H
        return {
            "x": _w((lambda *s: torch.randn(*s, dtype=torch.bfloat16) * 0.05)(B, S, D)),
            "wq": _w((lambda *s: torch.randn(*s, dtype=torch.bfloat16) * 0.8)(D, H * Dh)),
            "wk": _w((lambda *s: torch.randn(*s, dtype=torch.bfloat16) * 0.8)(D, Dh)),
            "wv": _w((lambda *s: torch.randn(*s, dtype=torch.bfloat16) * 0.05)(D, Dh)),
            "wo": _w((lambda *s: torch.randn(*s, dtype=torch.bfloat16) * 0.05)(H * Dh, D)),
        }
    _B_in = _B_setup()

    return {
        "A_x": _A_in["x"],
        "A_wq": _A_in["wq"],
        "A_wk": _A_in["wk"],
        "A_wv": _A_in["wv"],
        "A_wo": _A_in["wo"],
        "B_x": _B_in["x"],
        "B_wq": _B_in["wq"],
        "B_wk": _B_in["wk"],
        "B_wv": _B_in["wv"],
        "B_wo": _B_in["wo"],
        "gate_w": _w((lambda *s: torch.randn(*s, dtype=torch.bfloat16) * 0.05)(640) * 16.0),
    }

def reference(A_x, A_wq, A_wk, A_wv, A_wo, B_x, B_wq, B_wk, B_wv, B_wo, gate_w):
    def _A_ref(x, wq, wk, wv, wo):
        B, S, D = x.shape
        H = 32
        Dh = D // H
        q = (lambda x, *d: x.permute(*d))((x @ wq).reshape(B, S, H, Dh), 0, 2, 1, 3)
        k = x @ wk
        v = x @ wv
        scores = torch.einsum("bhqd,bkd->bhqk", q, k) * (Dh ** -0.5)
        p = _softmax(scores, axis=-1)
        o = torch.einsum("bhqk,bkd->bhqd", p, v)
        return (lambda x, *d: x.permute(*d))(o, 0, 2, 1, 3).reshape(B, S, H * Dh) @ wo

    def _B_ref(x, wq, wk, wv, wo):
        B, S, D = x.shape
        H = 32
        Dh = D // H
        q = (lambda x, *d: x.permute(*d))((x @ wq).reshape(B, S, H, Dh), 0, 2, 1, 3)
        k = x @ wk
        v = x @ wv
        scores = torch.einsum("bhqd,bkd->bhqk", q, k) * (Dh ** -0.5)
        p = _softmax(scores, axis=-1)
        o = torch.einsum("bhqk,bkd->bhqd", p, v)
        return (lambda x, *d: x.permute(*d))(o, 0, 2, 1, 3).reshape(B, S, H * Dh) @ wo

    x = A_x
    g = _sigmoid((x * gate_w).sum(-1, keepdims=True))
    a = _A_ref(x, A_wq, A_wk, A_wv, A_wo)
    b = _B_ref(x, B_wq, B_wk, B_wv, B_wo)
    return g * a + (1 - g) * b
```

```python
import re

TRANS = ("v_exp_f32","v_log_f32","v_rcp_f32","v_rsq_f32","v_sqrt_f32","v_sin_f32","v_cos_f32","v_exp_f16","v_rcp_iflag_f32")
def mfma_passes(m):
    if m.startswith("v_smfmac_f32_32x32x32"): return 8
    if m.startswith("v_smfmac_f32_16x16x64"): return 4
    if "_2b_" in m: return 16
    if "_4b_" in m: return 8
    if "_16b_" in m: return 2
    if "32x32x16" in m or "32x32x8" in m: return 8
    if "16x16x32" in m or "16x16x16" in m: return 4
    raise ValueError(m)

def regs_of(op):
    op = op.strip()
    op = re.sub(r"^-?abs\((.*)\)$", r"\1", op)
    op = op.lstrip("-").strip("|")
    m = re.fullmatch(r"([vsa])(\d+)", op)
    if m: return {(m.group(1), int(m.group(2)))}
    m = re.fullmatch(r"([vsa])\[(\d+):(\d+)\]", op)
    if m: return {(m.group(1), i) for i in range(int(m.group(2)), int(m.group(3))+1)}
    if op == "vcc": return {("s", 106), ("s", 107)}
    if op == "exec": return {("s", 126), ("s", 127)}
    if op == "m0": return {("s", 124)}
    return set()

class Ins:
    def __init__(self, text):
        self.text = text
        t = text.split(";")[0].strip()
        parts = t.split(None, 1)
        self.m = parts[0]
        rest = parts[1] if len(parts) > 1 else ""
        ops = [o.strip() for o in rest.split(",")]
        self.mods = ""
        if ops and ops[-1]:
            toks = ops[-1].split()
            ops[-1] = toks[0]; self.mods = " ".join(toks[1:])
        self.ops = ops
        m = self.m
        self.defs, self.uses = set(), set()
        self.kind = "other"
        R = regs_of
        if m.startswith("v_mfma"):
            self.kind = "mfma"; self.passes = mfma_passes(m)
            self.D = R(ops[0]); self.A = R(ops[1]); self.B = R(ops[2]); self.C = R(ops[3])
            self.defs = self.D; self.uses = self.A | self.B | self.C
        elif m.startswith("v_smfmac"):
            self.kind = "mfma"; self.passes = mfma_passes(m)
            self.D = R(ops[0]); self.A = R(ops[1]); self.B = R(ops[2]) | R(ops[3]); self.C = R(ops[0])
            self.defs = self.D; self.uses = self.A | self.B | self.C
        elif m.startswith("v_"):
            self.kind = "valu"
            if m.startswith("v_cmp"):
                self.defs = R(ops[0]); self.uses = set().union(*[R(o) for o in ops[1:]])
                if m.startswith("v_cmpx"): self.defs |= R("exec")
            elif m.startswith("v_readfirstlane") or m.startswith("v_readlane"):
                self.defs = R(ops[0]); self.uses = set().union(*[R(o) for o in ops[1:]])
            elif "permlane" in m and "swap" in m:
                self.defs = R(ops[0]) | R(ops[1]); self.uses = set(self.defs)
            elif m.startswith(("v_add_co","v_sub_co","v_addc_co","v_subb_co","v_subrev_co","v_mad_u64","v_div_scale")):
                self.defs = R(ops[0]) | R(ops[1]); self.uses = set().union(*[R(o) for o in ops[2:]])
            elif m == "v_nop":
                pass
            else:
                self.defs = R(ops[0]); self.uses = set().union(*[R(o) for o in ops[1:]]) if len(ops) > 1 else set()
                if m.startswith(("v_fmac","v_dot2c","v_pk_fmac","v_writelane")) or "UNUSED_PRESERVE" in self.mods or "dpp" in m or "row_" in self.mods or "quad_perm" in self.mods:
                    self.uses |= self.defs
                if m.startswith("v_cndmask") and len(ops) == 3: self.uses |= R("vcc")
            self.trans = m.replace("_e32","").replace("_e64","") in TRANS
            self.dpp = ("dpp" in m) or ("row_" in self.mods) or ("quad_perm" in self.mods)
        elif m.startswith("ds_"):
            self.kind = "ds"
            if m.startswith(("ds_read","ds_bpermute","ds_permute","ds_swizzle")):
                self.defs = R(ops[0]); self.uses = set().union(*[R(o) for o in ops[1:]])
            else:
                self.uses = set().union(*[R(o) for o in ops])
        elif m.startswith(("buffer_","global_","flat_")):
            self.kind = "vmem"
            lds = (" lds" in " "+self.mods) or "load_lds" in m
            self.lds = lds
            if "load" in m and not lds:
                self.defs = R(ops[0]); self.uses = set().union(*[R(o) for o in ops[1:]])
            else:
                self.uses = set().union(*[R(o) for o in ops])
                if "atomic" in m and "sc0" in self.mods and m.startswith("buffer_"): self.defs = R(ops[0])
                if "atomic" in m and "sc0" in self.mods and m.startswith("global_"):
                    self.defs = R(ops[0]); self.uses = set().union(*[R(o) for o in ops[1:]])
            if lds: self.uses |= R("m0")
            self.wide_store = ("store_dwordx3" in m or "store_dwordx4" in m)
            if self.wide_store:
                self.data = R(ops[0]) if m.startswith("buffer_") else R(ops[1])
        elif m.startswith("s_"):
            self.kind = "salu"
            if m.startswith(("s_cmp","s_cbranch","s_branch","s_waitcnt","s_barrier","s_nop","s_endpgm","s_setprio","s_sleep","s_bitcmp")):
                self.uses = set().union(*[R(o) for o in ops]) if ops else set()
            else:
                self.defs = R(ops[0]); self.uses = set().union(*[R(o) for o in ops[1:]]) if len(ops) > 1 else set()
                if "saveexec" in m: self.defs |= R("exec")
        mo = re.search(r"offset:(\d+)", self.mods)
        if mo:
            lim = 65535 if m.startswith("ds_") else 4095
            assert int(mo.group(1)) <= lim, "offset out of range: " + text
        self.states = 1
        if m == "s_nop": self.states = int(ops[0], 0) + 1

def vo(s): return {r for r in s if r[0] in "va"}
def so(s): return {r for r in s if r[0] == "s"}

def check(lines, label=""):
    ins = []
    for l in lines:
        t = l.split(";")[0].strip()
        if not t or t.endswith(":") or t.startswith("."): continue
        ins.append(Ins(t))
    errs = []
    W = 24
    for j, c in enumerate(ins):
        dist = 0
        for i in range(j-1, max(-1, j-W-1), -1):
            p = ins[i]
            need = 0; why = ""
            def req(n, w):
                nonlocal need, why
                if n > need: need, why = n, w
            if p.kind == "valu":
                if c.kind == "mfma" and vo(p.defs) & c.uses: req(2, "VALU->MFMA operand")
                if c.kind == "mfma" and ("s",126) in p.defs: req(4, "VALU exec->MFMA")
                if c.kind == "valu":
                    if p.trans and not c.trans and vo(p.defs) & c.uses: req(1, "trans->VALU")
                    if so(p.defs) & c.uses:
                        req(2, "VALU sgpr->VALU const")
                        if c.m.startswith(("v_readlane","v_writelane")): req(4, "VALU sgpr->lane sel")
                    if c.m.startswith(("v_readfirstlane","v_readlane")) and vo(p.defs) & c.uses: req(1, "VALU->readlane")
                    if "permlane" in c.m and vo(p.defs) & c.uses: req(2, "VALU->permlane")
                    if c.dpp and vo(p.defs) & c.uses: req(2, "VALU->DPP")
                    if ("s",126) in p.defs and (c.dpp): req(5, "VALU exec->DPP")
                    if ("s",126) in p.defs and (c.m.startswith(("v_readlane","v_readfirstlane","v_writelane")) or "permlane" in c.m): req(4, "cmpx->lane op")
                    if ("sdwa" in p.m or "op_sel" in p.mods) and vo(p.defs) & (c.uses|c.defs): req(1, "sdwa/opsel->VALU")
                if c.kind == "vmem" and so(p.defs) & c.uses: req(5, "VALU sgpr->VMEM")
            if p.kind == "mfma":
                P = p.passes
                if c.kind == "mfma":
                    if p.D & c.C:
                        if p.D == c.C and P == c.passes: req(2 if P == 2 else 0, "acc chain")
                        else: req({2:4,4:6,8:10,16:18}[P], "MFMA D->SrcC overlap")
                    if p.D & (c.A | c.B): req({2:5,4:8,8:12,16:20}[P], "MFMA D->A/B")
                    if (p.D & c.D) and not (p.D & c.C): req({2:5,4:8,8:12,16:20}[P], "MFMA D->D WAW (conservative)")
                elif c.kind in ("valu","ds","vmem"):
                    if p.D & (c.uses | c.defs): req({2:5,4:8,8:12,16:20}[P], "MFMA D->VALU/mem")
                    if c.kind == "valu" and (p.C & c.defs): req({2:1,4:3,8:7,16:15}[P], "MFMA SrcC WAR")
            if p.kind == "salu" and ("s",124) in p.defs and c.kind == "vmem" and getattr(c,"lds",False): req(1, "m0->LDS DMA")
            if p.kind == "vmem" and getattr(p,"wide_store",False) and (p.data & c.defs):
                req(2 if c.kind == "valu" else 1, "wide store WAR")
            if need > dist:
                errs.append(f"[{label}] hazard {why}: need {need} have {dist}:\n    {p.text}\n    {c.text}")
            dist += p.states
    return errs

class Asm:
    def __init__(self):
        self.lines = []
    def __call__(self, s):
        for l in s.strip("\n").split("\n"):
            l = l.strip()
            if l: self.lines.append(l)
    def text(self):
        out = []
        for l in self.lines:
            if l.endswith(":") or l.startswith(".") or l.startswith(";"): out.append(l)
            else: out.append("    " + l)
        return "\n".join(out) + "\n"
```

```python
import sys
from asmlib import Asm, check

NAME = "gated_mix__grouped_kv_mqa__grouped_kv_mqa__prompt"
KVIMG = 163840
WS_KV = 0
WS_KMAX = 0x50000
WS_GATE = 0x51000
WS_O = 0x60000
WS_SIZE = WS_O + 32*8*20480
WS_TIME = 0x600000
CSCALE = 0x3ea52a34
import struct, math
CSCALE = struct.unpack("<I", struct.pack("<f", math.log2(math.e)/math.sqrt(20.0)))[0]
LOG2E = struct.unpack("<I", struct.pack("<f", math.log2(math.e)))[0]

def r(b, n): return f"v[{b}:{b+n-1}]"

def decode_wg(a):
    a("""
v_lshrrev_b32 v1, 6, v0
v_and_b32 v2, 63, v0
s_and_b32 s21, s2, 7
v_readfirstlane_b32 s20, v1
s_lshr_b32 s22, s2, 6
s_lshl_b32 s22, s22, 3
s_add_u32 s21, s21, s22
s_bfe_u32 s22, s2, 0x30003
s_lshr_b32 s23, s22, 2
s_and_b32 s24, s22, 3
""")

def srd(a, d, lo, size):
    a(f"s_mov_b32 s{d}, s{lo}")
    a(f"s_mov_b32 s{d+1}, s{lo+1}")
    a(f"s_mov_b32 s{d+2}, {size}")
    a(f"s_mov_b32 s{d+3}, 0x00020000")

def header(a, name):
    a(f""".globl {name}
.p2align 8
.type {name},@function
{name}:""")

def kd(name, nv, ns):
    return f"""
.amdhsa_kernel {name}
  .amdhsa_next_free_vgpr {nv}
  .amdhsa_next_free_sgpr {ns}
  .amdhsa_accum_offset {nv}
  .amdhsa_group_segment_fixed_size 0
  .amdhsa_kernarg_size 112
  .amdhsa_user_sgpr_count 2
  .amdhsa_user_sgpr_kernarg_segment_ptr 1
  .amdhsa_system_sgpr_workgroup_id_x 1
.end_amdhsa_kernel
"""

def gen_k1():
    a = Asm()
    header(a, "kv_kernel")
    a("""
s_cmp_ge_u32 s2, 256
s_cbranch_scc1 K1_end
s_load_dwordx2 s[4:5], s[0:1], 0
s_load_dwordx4 s[36:39], s[0:1], 16
s_load_dwordx4 s[40:43], s[0:1], 56
s_load_dwordx2 s[44:45], s[0:1], 80
s_load_dwordx2 s[46:47], s[0:1], 104
""")
    decode_wg(a)
    a("""
v_and_b32 v3, 15, v2
v_lshrrev_b32 v4, 4, v2
s_waitcnt lgkmcnt(0)
""")
    srd(a, 8, 4, 2048*1280)
    srd(a, 16, 44, 1280)
    srd(a, 48, 46, WS_SIZE)
    a("""
s_cmp_eq_u32 s23, 0
s_cselect_b32 s36, s36, s40
s_cselect_b32 s37, s37, s41
s_cselect_b32 s38, s38, s42
s_cselect_b32 s39, s39, s43
s_cmp_lt_u32 s20, 2
s_cselect_b32 s12, s36, s38
s_cselect_b32 s13, s37, s39
s_mov_b32 s14, 25600
s_mov_b32 s15, 0x00020000
""")
    a("""
v_lshlrev_b32 v5, 4, v2
s_and_b32 s25, s20, 1
s_lshl_b32 s25, s25, 10
s_lshr_b32 s26, s20, 1
s_mul_i32 s26, s26, 25600
K1_dma:
s_add_u32 s27, s26, s25
s_mov_b32 m0, s27
s_nop 0
buffer_load_dwordx4 v5, s[12:15], s25 offen lds
s_add_u32 s25, s25, 2048
s_cmp_lt_u32 s25, 25600
s_cbranch_scc1 K1_dma
""")
    a("""
s_lshl_b32 s28, s21, 6
s_lshl_b32 s29, s24, 4
s_add_u32 s28, s28, s29
s_mul_i32 s29, s28, 1280
v_mul_u32_u24 v6, 1280, v3
v_lshl_add_u32 v6, v4, 4, v6
v_lshlrev_b32 v7, 4, v4
""")
    XF = 32
    for ks in range(20):
        a(f"buffer_load_dwordx4 {r(XF+4*ks,4)}, v6, s[8:11], s29 offen offset:{ks*64}")
    GF = 112
    a("s_cmp_lg_u32 s20, 1\ns_cbranch_scc1 K1_nogate")
    for ks in range(20):
        a(f"buffer_load_dwordx4 {r(GF+4*ks,4)}, v7, s[16:19], 0 offen offset:{ks*64}")
    a("K1_nogate:")
    a("""
v_lshrrev_b32 v8, 2, v3
v_lshl_add_u32 v8, v4, 3, v8
v_mul_u32_u24 v8, 40, v8
v_and_b32 v9, 3, v3
v_lshlrev_b32 v9, 3, v9
s_and_b32 s25, s20, 1
s_cmp_eq_u32 s25, 1
s_cbranch_scc0 K1_c0
v_mov_b32 v9, 32
K1_c0:
v_add3_u32 v8, v8, v9, s26
v_mov_b32 v12, 0
v_mov_b32 v13, 0
v_mov_b32 v14, 0
v_mov_b32 v15, 0
v_mov_b32 v16, 0
v_mov_b32 v17, 0
v_mov_b32 v18, 0
v_mov_b32 v19, 0
s_waitcnt vmcnt(0)
s_barrier
""")
    WF = 192
    def chain(kind):
        for half in range(2):
            for k in range(10):
                ks = half*10 + k
                a(f"ds_read_b64_tr_b16 {r(WF+4*k,2)}, v8 offset:{ks*1280}")
                a(f"ds_read_b64_tr_b16 {r(WF+4*k+2,2)}, v8 offset:{ks*1280+160}")
                if k == 6: a("s_waitcnt lgkmcnt(0)")
            a("s_waitcnt lgkmcnt(0)")
            for k in range(10):
                ks = half*10 + k
                if kind == 'K':
                    a(f"v_mfma_f32_16x16x32_bf16 v[12:15], {r(WF+4*k,4)}, {r(XF+4*ks,4)}, v[12:15]")
                else:
                    a(f"v_mfma_f32_16x16x32_bf16 v[12:15], {r(XF+4*ks,4)}, {r(WF+4*k,4)}, v[12:15]")
    a("s_cmp_ge_u32 s20, 2\ns_cbranch_scc1 K1_V")
    chain('K')
    a(f"""
s_lshr_b32 s30, s28, 7
s_mul_i32 s30, s30, 10240
s_mul_i32 s31, s23, {KVIMG}
s_add_u32 s30, s30, s31
s_mov_b32 s33, {CSCALE}
s_nop 4
v_mul_f32 v12, s33, v12
v_mul_f32 v13, s33, v13
v_mul_f32 v14, s33, v14
v_mul_f32 v15, s33, v15
v_cvt_pk_bf16_f32 v20, v12, v13
v_cvt_pk_bf16_f32 v21, v14, v15
v_mul_f32 v22, v12, v12
v_fmac_f32 v22, v13, v13
v_fmac_f32 v22, v14, v14
v_fmac_f32 v22, v15, v15
s_cmp_eq_u32 s20, 1
s_cbranch_scc1 K1_K4
""")
    a("""
s_bfe_u32 s31, s28, 0x20005
s_lshl_b32 s31, s31, 10
s_add_u32 s30, s30, s31
s_and_b32 s31, s28, 31
s_lshl_b32 s31, s31, 4
s_add_u32 s30, s30, s31
v_lshrrev_b32 v23, 1, v4
v_lshlrev_b32 v23, 9, v23
v_lshl_add_u32 v23, v3, 4, v23
v_and_b32 v24, 1, v4
v_lshl_add_u32 v23, v24, 3, v23
buffer_store_dwordx2 v[20:21], v23, s[48:51], s30 offen
v_mov_b32 v24, v22
s_nop 1
v_permlane16_swap_b32 v22, v24
s_nop 1
v_add_f32 v22, v22, v24
v_mov_b32 v24, v22
s_nop 1
v_permlane32_swap_b32 v22, v24
s_nop 1
v_add_f32 v22, v22, v24
s_mov_b32 s34, 0
s_branch K1_kmax
K1_K4:
""")
    for ks in range(20):
        a(f"v_mfma_f32_16x16x32_bf16 v[16:19], {r(GF+4*ks,4)}, {r(XF+4*ks,4)}, v[16:19]")
    a(f"""
s_and_b32 s31, s28, 63
s_lshl_b32 s31, s31, 4
s_add_u32 s30, s30, s31
s_bfe_u32 s31, s28, 0x10006
s_lshl_b32 s31, s31, 3
s_add_u32 s30, s30, s31
s_add_u32 s30, s30, 4096
v_lshlrev_b32 v23, 4, v3
s_mov_b32 s33, {LOG2E}
s_cmp_eq_u32 s23, 0
s_cselect_b32 s35, 0x80000000, 0
s_xor_b32 s33, s33, s35
s_mov_b64 exec, 0xffff
buffer_store_dwordx2 v[20:21], v23, s[48:51], s30 offen
v_mul_f32 v16, s33, v16
v_exp_f32 v16, v16
s_lshl_b32 s31, s23, 13
v_add_f32 v16, 1.0, v16
v_rcp_f32 v16, v16
s_lshl_b32 s35, s28, 2
s_add_u32 s31, s31, s35
s_add_u32 s31, s31, {WS_GATE}
v_lshlrev_b32 v23, 2, v3
buffer_store_dword v16, v23, s[48:51], s31 offen
s_mov_b64 exec, -1
s_mov_b32 s34, 512
K1_kmax:
s_nop 1
v_max_f32_dpp v22, v22, v22 row_ror:8 row_mask:0xf bank_mask:0xf
s_nop 1
v_max_f32_dpp v22, v22, v22 row_ror:4 row_mask:0xf bank_mask:0xf
s_nop 1
v_max_f32_dpp v22, v22, v22 row_ror:2 row_mask:0xf bank_mask:0xf
s_nop 1
v_max_f32_dpp v22, v22, v22 row_ror:1 row_mask:0xf bank_mask:0xf
s_lshl_b32 s31, s23, 10
s_add_u32 s31, s31, s34
s_lshr_b32 s35, s28, 4
s_lshl_b32 s35, s35, 2
s_add_u32 s31, s31, s35
s_add_u32 s31, s31, {WS_KMAX}
v_mov_b32 v23, 0
s_mov_b64 exec, 1
buffer_store_dword v22, v23, s[48:51], s31 offen
s_endpgm
K1_V:
""")
    chain('V')
    a(f"""
s_lshr_b32 s30, s28, 7
s_mul_i32 s30, s30, 10240
s_mul_i32 s31, s23, {KVIMG}
s_add_u32 s30, s30, s31
s_bfe_u32 s31, s28, 0x30004
s_mul_i32 s31, s31, 640
s_add_u32 s30, s30, s31
s_add_u32 s30, s30, 5120
v_lshrrev_b32 v23, 1, v4
v_mul_u32_u24 v23, 320, v23
v_lshl_add_u32 v23, v3, 4, v23
v_and_b32 v24, 1, v4
v_lshl_add_u32 v23, v24, 3, v23
v_cvt_pk_bf16_f32 v20, v12, v13
v_cvt_pk_bf16_f32 v21, v14, v15
s_cmp_eq_u32 s20, 2
s_cbranch_scc1 K1_vst
s_add_u32 s30, s30, 256
s_mov_b32 exec_lo, 0x000f000f
s_mov_b32 exec_hi, 0x000f000f
K1_vst:
buffer_store_dwordx2 v[20:21], v23, s[48:51], s30 offen
K1_end:
s_endpgm
""")
    for e in check(a.lines, "k1"): print(e)
    return a

S = [16, 48]
O = [80, 96]
NEGM = 112
Q16 = [144, 148]
Q4 = 152
IDX = 154
K16 = [156, 160]
K4 = 164
V = [[172, 176], [180, 184]]
AK, AV = 188, 189
R2 = 61440
R3 = 143360
SCHED = [2,'Sp','W',3,'T',8,'S0',2,'LV',3,'S1',2,'LK',2,'M0',4,'S2',3,'M1',3]
PRIO_SWITCH = 13

def step(a, j, sched):
    X = S[j % 2]; Y = S[(j+1) % 2]
    Vc = V[j % 2]; Vp = V[(j+1) % 2]
    jn = (j + 1) % 4
    k4 = K4 + (2 if jn >= 2 else 0)
    abid = jn & 1
    def e(i): a(f"v_exp_f32 v{X+i}, v{X+i}")
    ops = {
      'W': lambda: a("s_waitcnt lgkmcnt(0)"),
      'Sp': lambda: a(f"v_smfmac_f32_32x32x32_bf16 {r(O[1],16)}, {r(Vp[1],4)}, {r(Y+24,8)}, v{IDX}"),
      'T': lambda: a(f"v_mfma_f32_32x32x4_2b_bf16 {r(Y,32)}, {r(k4,2)}, {r(Q4,2)}, {r(NEGM,32)} cbsz:1 abid:{abid}"),
      'S0': lambda: a(f"v_smfmac_f32_32x32x32_bf16 {r(O[0],16)}, {r(Vc[0],4)}, {r(X,8)}, v{IDX}"),
      'S1': lambda: a(f"v_smfmac_f32_32x32x32_bf16 {r(O[0],16)}, {r(Vc[1],4)}, {r(X+8,8)}, v{IDX}"),
      'S2': lambda: a(f"v_smfmac_f32_32x32x32_bf16 {r(O[1],16)}, {r(Vc[0],4)}, {r(X+16,8)}, v{IDX}"),
      'M0': lambda: a(f"v_mfma_f32_32x32x16_bf16 {r(Y,16)}, {r(K16[(j+1)%2],4)}, {r(Q16[0],4)}, {r(Y,16)}"),
      'M1': lambda: a(f"v_mfma_f32_32x32x16_bf16 {r(Y+16,16)}, {r(K16[(j+1)%2],4)}, {r(Q16[1],4)}, {r(Y+16,16)}"),
    }
    def LV():
        voff = 5120 + (j+1)*1280 if j < 3 else 10240 + 5120
        a("s_mov_b64 exec, s[30:31]")
        a(f"ds_read_b128 {r(Vp[0],4)}, v{AV} offset:{voff}")
        a(f"ds_read_b128 {r(Vp[1],4)}, v{AV} offset:{voff+640}")
        a("s_mov_b64 exec, -1")
    def LK():
        koff = (j+2)*1024 if j < 2 else 10240 + (j-2)*1024
        a(f"ds_read_b128 {r(K16[j%2],4)}, v{AK} offset:{koff}")
        if j == 2:
            a(f"ds_read_b128 {r(K4,4)}, v{AK} offset:{10240+4096}")
        if j == 3:
            a(f"v_add_u32 v{AK}, s29, v{AK}")
            a(f"v_add_u32 v{AV}, s29, v{AV}")
    ops['LV'] = LV; ops['LK'] = LK
    ei = 0
    for tok in sched:
        if isinstance(tok, int):
            for _ in range(tok): e(ei); ei += 1
        else: ops[tok]()
    assert ei == 32

def qproj(a):
    WL = 156
    AF = [112, 128]
    BF = [48, 80]
    XA = 144
    ACC = [16, 32]
    for s in range(8):
        a(f"v_add_u32 v5, {2*s}, v4")
        a(f"v_and_b32 v6, 15, v3")
        a(f"v_xor_b32 v5, v5, v6")
        a(f"v_lshlrev_b32 v5, 4, v5")
        a(f"v_lshl_add_u32 v{XA+s}, v3, 8, v5")
        a(f"v_add_u32 v{XA+s}, {R2}, v{XA+s}")
    a(f"""
s_mul_i32 s33, s20, 2560
s_add_u32 s33, s33, {R3}
v_lshlrev_b32 v152, 3, v2
v_add_u32 v152, s33, v152
v_bfe_u32 v5, v2, 2, 2
v_lshl_add_u32 v5, v4, 3, v5
v_mul_u32_u24 v5, 40, v5
v_and_b32 v6, 1, v2
v_lshlrev_b32 v6, 4, v6
v_bfe_u32 v7, v2, 1, 1
v_lshl_add_u32 v6, v7, 3, v6
v_and_b32 v7, 16, v2
v_cmp_eq_u32 vcc, 0, v7
v_mov_b32 v7, 32
s_nop 0
v_cndmask_b32 v6, v6, v7, vcc
v_add3_u32 v153, v5, v6, s33
""")
    for i in range(32): a(f"v_mov_b32 v{16+i}, 0")
    def stage(c, nafter):
        a(f"s_waitcnt vmcnt({min(63, 45 - 5*c + nafter)})")
        for i in range(5):
            a(f"ds_write_b64 v152, {r(WL+10*c+2*i,2)} offset:{512*i}")
        for k in range(4):
            a(f"ds_read_b64_tr_b16 {r(AF[c%2]+4*k,2)}, v153 offset:{k*640}")
            a(f"ds_read_b64_tr_b16 {r(AF[c%2]+4*k+2,2)}, v153 offset:{k*640+160}")
    def xread(c, k):
        ks = 4*c + k
        kb = ks >> 3
        for t in range(2):
            off = (kb % 2 if kb < 4 else 2)*16384 + t*8192
            a(f"ds_read_b128 {r(BF[c%2]+8*k+4*t,4)}, v{XA+(ks&7)} offset:{off}")
    return stage, xread, AF, BF, XA, ACC

def gen_k2(timing=False):
    a = Asm()
    header(a, "attn_kernel")
    a("""
s_cmp_ge_u32 s2, 256
s_cbranch_scc1 K2_end
s_load_dwordx4 s[4:7], s[0:1], 0
s_load_dwordx2 s[36:37], s[0:1], 48
s_load_dwordx2 s[46:47], s[0:1], 104
""")
    if timing: a("s_memtime s[60:61]\ns_memrealtime s[62:63]")
    decode_wg(a)
    a("""
v_and_b32 v3, 31, v2
v_lshrrev_b32 v4, 5, v2
""")
    for i in range(5):
        a(f"v_add_u32 v10, {64*i}, v2")
        a(f"v_mul_u32_u24 v11, 52429, v10")
        a(f"v_lshrrev_b32 v11, 18, v11")
        a(f"v_mul_u32_u24 v12, 1240, v11")
        a(f"v_lshl_add_u32 v{5+i}, v10, 3, v12")
    a("""
s_lshl_b32 s25, s20, 2
v_lshrrev_b32 v11, 4, v2
v_add_u32 v11, s25, v11
v_xor_b32 v12, v11, v2
v_and_b32 v12, 15, v12
v_mul_u32_u24 v11, 1280, v11
v_lshl_add_u32 v10, v12, 4, v11
v_lshlrev_b32 v13, 4, v2
s_waitcnt lgkmcnt(0)
""")
    srd(a, 8, 46, 0x1000000 if timing else WS_SIZE)
    srd(a, 12, 4, 2048*1280)
    a("""
s_cmp_eq_u32 s23, 0
s_cselect_b32 s16, s6, s36
s_cselect_b32 s17, s7, s37
s_mov_b32 s18, 819200
s_mov_b32 s19, 0x00020000
""")
    a(f"""
s_mul_i32 s26, s21, {64*1280}
s_lshl_b32 s27, s20, 10
s_add_u32 s27, s27, {R2}
""")
    for kb in range(5):
        for t in range(2):
            a(f"s_add_u32 s33, s27, {kb*16384 + t*8192}")
            a(f"s_mov_b32 m0, s33")
            a(f"s_add_u32 s34, s26, {kb*256 + t*32*1280}")
            a(f"buffer_load_dwordx4 v10, s[12:15], s34 offen lds")
    a("""
s_lshl_b32 s25, s24, 3
s_add_u32 s25, s25, s20
s_mul_i32 s34, s25, 40
""")
    WL = 156
    for c in range(10):
        for i in range(5):
            a(f"buffer_load_dwordx2 {r(WL+10*c+2*i,2)}, v{5+i}, s[16:19], s34 offen")
        if c < 9: a(f"s_add_u32 s34, s34, {64*1280}")
    stage, xread, AF, BF, XA, ACC = qproj(a)
    a("s_waitcnt vmcnt(50)")
    a("s_barrier")
    a(f"""
s_mul_i32 s26, s23, {KVIMG}
s_lshl_b32 s33, s20, 10
s_add_u32 s26, s26, s33
""")
    NE = 7
    for rd in range(NE):
        a(f"s_mov_b32 m0, s33")
        a(f"s_add_u32 s33, s33, 8192")
        a(f"buffer_load_dwordx4 v13, s[8:11], s26 offen lds")
        a(f"s_add_u32 s26, s26, 8192")
    a(f"""
s_lshl_b32 s35, s23, 13
s_lshl_b32 s34, s21, 8
s_add_u32 s35, s35, s34
s_add_u32 s35, s35, {WS_GATE}
v_lshlrev_b32 v8, 2, v3
buffer_load_dword v10, v8, s[8:11], s35 offen
buffer_load_dword v11, v8, s[8:11], s35 offen offset:128
s_lshl_b32 s35, s23, 10
s_add_u32 s35, s35, {WS_KMAX}
v_lshlrev_b32 v8, 3, v2
buffer_load_dwordx2 v[12:13], v8, s[8:11], s35 offen
buffer_load_dwordx2 v[14:15], v8, s[8:11], s35 offen offset:512
""")
    NAFTER = NE + 4
    stage(0, NAFTER)
    for k in range(4): xread(0, k)
    for c in range(10):
        a("s_waitcnt lgkmcnt(0)")
        if c == 3:
            for s in range(8): a(f"v_add_u32 v{XA+s}, 32768, v{XA+s}")
        if c < 9: stage(c+1, NAFTER)
        for k in range(4):
            for t in range(2):
                a(f"v_mfma_f32_32x32x16_bf16 {r(ACC[t],16)}, {r(AF[c%2]+4*k,4)}, {r(BF[c%2]+8*k+4*t,4)}, {r(ACC[t],16)}")
            if c < 9:
                if k == 0: a("s_waitcnt lgkmcnt(6)")
                xread(c+1, k)
    a("s_barrier")
    a("v_lshlrev_b32 v188, 4, v2")
    a("s_cmp_lt_u32 s20, 4\ns_cbranch_scc1 K2_nodma")
    a(f"""
s_mul_i32 s26, s23, {KVIMG}
s_sub_u32 s33, s20, 4
s_lshl_b32 s33, s33, 10
s_add_u32 s33, s33, {NE*8192}
K2_dma:
s_mov_b32 m0, s33
s_add_u32 s34, s26, s33
buffer_load_dwordx4 v188, s[8:11], s34 offen lds
s_add_u32 s33, s33, 4096
s_cmp_lt_u32 s33, {KVIMG}
s_cbranch_scc1 K2_dma
K2_nodma:
s_nop 7
""")
    for t in range(2):
        for i in range(4):
            a(f"v_cvt_pk_bf16_f32 v{Q16[t]+i}, v{ACC[t]+8+2*i}, v{ACC[t]+9+2*i}")
    a(f"""
v_cvt_pk_bf16_f32 v{Q4}, v16, v17
v_cvt_pk_bf16_f32 v{Q4+1}, v18, v19
s_mov_b32 exec_lo, 0
v_cvt_pk_bf16_f32 v{Q4}, v32, v33
v_cvt_pk_bf16_f32 v{Q4+1}, v34, v35
s_mov_b64 exec, -1
""")
    for t in range(2):
        d = 48 + t
        a(f"v_mul_f32 v{d}, v{ACC[t]+8}, v{ACC[t]+8}")
        for i in range(9, 16): a(f"v_fmac_f32 v{d}, v{ACC[t]+i}, v{ACC[t]+i}")
    a("""
v_mov_b32 v50, v48
v_mov_b32 v51, v49
s_nop 1
v_permlane32_swap_b32 v48, v50
v_permlane32_swap_b32 v49, v51
s_nop 1
v_add_f32 v48, v48, v50
v_add_f32 v49, v49, v51
""")
    for t in range(2):
        for i in range(4): a(f"v_fmac_f32 v{48+t}, v{ACC[t]+i}, v{ACC[t]+i}")
    a("s_cmp_lt_u32 s20, 4\ns_cbranch_scc1 K2_wa\ns_waitcnt vmcnt(26)\ns_branch K2_wb\nK2_wa:\ns_waitcnt vmcnt(0)\nK2_wb:")
    a("""
v_max_f32 v12, v12, v13
v_max_f32 v14, v14, v15
""")
    for rr in (8, 4, 2, 1):
        a("s_nop 1")
        a(f"v_max_f32_dpp v12, v12, v12 row_ror:{rr} row_mask:0xf bank_mask:0xf")
        a(f"v_max_f32_dpp v14, v14, v14 row_ror:{rr} row_mask:0xf bank_mask:0xf")
    a("""
v_mov_b32 v13, v12
v_mov_b32 v15, v14
s_nop 1
v_permlane16_swap_b32 v12, v13
v_permlane16_swap_b32 v14, v15
s_nop 1
v_max_f32 v12, v12, v13
v_max_f32 v14, v14, v15
v_mov_b32 v13, v12
v_mov_b32 v15, v14
s_nop 1
v_permlane32_swap_b32 v12, v13
v_permlane32_swap_b32 v14, v15
s_nop 1
v_max_f32 v12, v12, v13
v_max_f32 v14, v14, v15
v_add_f32 v12, v12, v14
v_mul_f32 v48, v48, v12
v_mul_f32 v49, v49, v12
v_sqrt_f32 v48, v48
v_sqrt_f32 v49, v49
s_nop 0
v_mul_f32 v48, 0xbf8147ae, v48
v_mul_f32 v49, 0xbf8147ae, v49
""")
    a(f"""
s_mov_b32 s30, 0x000fffff
s_mov_b32 s31, 0x000fffff
s_movk_i32 s29, 10240
v_mov_b32 v{IDX}, 0xdddddddd
v_mul_u32_u24 v{AV}, 320, v4
v_lshl_add_u32 v{AV}, v3, 4, v{AV}
v_and_b32 v13, 27, v3
v_cmp_eq_u32 vcc, 24, v13
v_mov_b32 v14, 0x3f803f80
s_nop 0
v_cndmask_b32 v14, 0, v14, vcc
""")
    for b in (V[0][0], V[0][1], V[1][0], V[1][1]):
        for i in range(4): a(f"v_mov_b32 v{b+i}, v14")
    a(f"""
v_min_f32 v50, v48, v49
v_mov_b32 v51, 0xc2200000
v_cmp_nge_f32 vcc, v50, v51
s_mov_b32 s35, 2
s_mov_b32 s36, {PRIO_SWITCH}
s_barrier
s_cmp_lg_u64 vcc, 0
s_cbranch_scc1 K2_slow
s_setprio 2
s_cmp_lt_u32 s20, 4
s_cbranch_scc1 K2_go
s_setprio 1
s_waitcnt vmcnt(0)
s_barrier
K2_nosync:
s_mov_b32 s35, -1
s_mov_b32 s36, -1
K2_go:
""")
    for i in range(16):
        a(f"v_mov_b32 v{NEGM+i}, v48")
        a(f"v_mov_b32 v{NEGM+16+i}, v49")
    a(f"""
ds_read_b128 {r(K16[0],4)}, v{AK} offset:0
ds_read_b128 {r(K16[1],4)}, v{AK} offset:1024
ds_read_b128 {r(K4,4)}, v{AK} offset:4096
s_mov_b64 exec, s[30:31]
ds_read_b128 {r(V[0][0],4)}, v{AV} offset:5120
ds_read_b128 {r(V[0][1],4)}, v{AV} offset:5760
s_mov_b64 exec, -1
""")
    for i in range(24, 32): a(f"v_mov_b32 v{S[1]+i}, 0")
    a(f"""
s_waitcnt lgkmcnt(0)
v_mfma_f32_32x32x4_2b_bf16 {r(S[0],32)}, {r(K4,2)}, {r(Q4,2)}, {r(NEGM,32)} cbsz:1 abid:0
""")
    for i in range(32): a(f"v_mov_b32 v{O[0]+i}, 0")
    a(f"""
v_mfma_f32_32x32x16_bf16 {r(S[0],16)}, {r(K16[0],4)}, {r(Q16[0],4)}, {r(S[0],16)}
v_mfma_f32_32x32x16_bf16 {r(S[0]+16,16)}, {r(K16[0],4)}, {r(Q16[1],4)}, {r(S[0]+16,16)}
s_mov_b32 s34, 0
s_nop 10
""")
    if timing: a("s_memtime s[64:65]")
    pro = list(a.lines)
    a(".p2align 6")
    a("K2_loop:")
    body = Asm()
    for j in range(4): step(body, j, SCHED)
    for e in check(body.lines + body.lines, "loop"): print(e)
    for e in check(pro + body.lines, "pro"): print(e)
    a.lines += body.lines
    a("""
s_add_u32 s34, s34, 1
s_cmp_eq_u32 s34, s35
s_cbranch_scc1 K2_sync1
s_cmp_eq_u32 s34, s36
s_cbranch_scc1 K2_sync2
s_cmp_lt_u32 s34, 16
s_cbranch_scc1 K2_loop
""")
    ep = Asm()
    ep(f"v_smfmac_f32_32x32x32_bf16 {r(O[1],16)}, {r(V[1][1],4)}, {r(S[1]+24,8)}, v{IDX}")
    if timing: ep("s_memtime s[66:67]")
    ep(f"""
s_lshl_b32 s26, s21, 3
s_add_u32 s26, s26, s22
s_mul_i32 s26, s26, 20480
s_add_u32 s26, s26, {WS_O}
s_lshr_b32 s27, s20, 1
s_lshl_b32 s27, s27, 12
s_and_b32 s28, s20, 1
s_lshl_b32 s28, s28, 9
s_add_u32 s27, s27, s28
s_add_u32 s27, s27, s26
v_and_b32 v5, 15, v2
v_bfe_u32 v6, v2, 4, 1
v_lshlrev_b32 v5, 4, v5
v_lshl_add_u32 v5, v6, 10, v5
v_lshl_add_u32 v7, v4, 8, v5
v_lshl_add_u32 v8, v4, 11, v5
s_and_b32 s28, s20, 3
s_lshl_b32 s28, s28, 8
s_lshr_b32 s33, s20, 2
s_lshl_b32 s33, s33, 3
s_add_u32 s28, s28, s33
s_add_u32 s28, s28, s26
s_add_u32 s28, s28, 16384
""")
    for t in range(2):
        ep(f"v_rcp_f32 v{112+t}, v{O[t]+12}")
    ep("s_nop 0")
    for t in range(2):
        ep(f"v_mul_f32 v{112+t}, v{112+t}, v{10+t}")
    for t in range(2):
        for i in range(12):
            ep(f"v_mul_f32 v{O[t]+i}, v{O[t]+i}, v{112+t}")
        for i in range(6):
            ep(f"v_cvt_pk_bf16_f32 v{116+8*t+i}, v{O[t]+2*i}, v{O[t]+2*i+1}")
    ep(f"""
buffer_store_dwordx4 v[116:119], v7, s[8:11], s27 offen
buffer_store_dwordx4 v[124:127], v7, s[8:11], s27 offen offset:2048
v_permlane32_swap_b32 v120, v128
v_permlane32_swap_b32 v121, v129
s_nop 0
buffer_store_dwordx2 v[120:121], v8, s[8:11], s28 offen
""")
    if timing:
        ep(f"""
s_memtime s[68:69]
s_memrealtime s[70:71]
s_waitcnt lgkmcnt(0)
v_mov_b32 v40, s60
v_mov_b32 v41, s64
v_mov_b32 v42, s66
v_mov_b32 v43, s68
v_mov_b32 v44, s62
v_mov_b32 v45, s70
v_mov_b32 v46, 0
v_mov_b32 v47, 0
s_lshl_b32 s26, s2, 3
s_add_u32 s26, s26, s20
s_lshl_b32 s26, s26, 5
s_add_u32 s26, s26, {WS_TIME}
v_mov_b32 v9, 0
s_mov_b64 exec, 1
buffer_store_dwordx4 v[40:43], v9, s[8:11], s26 offen
buffer_store_dwordx4 v[44:47], v9, s[8:11], s26 offen offset:16
""")
    for e in check(body.lines + ["s_nop 3"] + ep.lines, "epi"): print(e)
    a.lines += ep.lines
    a("""
K2_end:
s_endpgm
K2_sync1:
s_barrier
s_branch K2_loop
K2_sync2:
s_setprio 0
s_branch K2_loop
""")
    sl = Asm()
    sl(f"""
K2_slow:
s_waitcnt vmcnt(0)
s_barrier
v_mov_b32 v48, 0xff800000
v_mov_b32 v49, 0xff800000
v_mov_b32 v52, v{AK}
s_mov_b32 s34, 0
K2_sl_loop:
ds_read_b128 {r(K4,4)}, v52 offset:4096
""")
    for j in range(4):
        sl(f"ds_read_b128 {r(K16[0],4)}, v52 offset:{j*1024}")
        sl("s_waitcnt lgkmcnt(0)")
        sl(f"v_mfma_f32_32x32x4_2b_bf16 v[16:47], {r(K4+(2 if j>=2 else 0),2)}, {r(Q4,2)}, 0 cbsz:1 abid:{j&1}")
        sl("s_nop 15\ns_nop 1")
        sl(f"v_mfma_f32_32x32x16_bf16 v[16:31], {r(K16[0],4)}, {r(Q16[0],4)}, v[16:31]")
        sl(f"v_mfma_f32_32x32x16_bf16 v[32:47], {r(K16[0],4)}, {r(Q16[1],4)}, v[32:47]")
        sl("s_nop 11")
        for t in range(2):
            for i in range(0, 16, 2):
                sl(f"v_max3_f32 v{48+t}, v{16+16*t+i}, v{17+16*t+i}, v{48+t}")
    sl(f"""
v_add_u32 v52, s29, v52
s_add_u32 s34, s34, 1
s_cmp_lt_u32 s34, 16
s_cbranch_scc1 K2_sl_loop
v_mov_b32 v50, v48
v_mov_b32 v51, v49
s_nop 1
v_permlane32_swap_b32 v48, v50
v_permlane32_swap_b32 v49, v51
s_nop 1
v_max_f32 v48, v48, v50
v_max_f32 v49, v49, v51
v_sub_f32 v48, 0, v48
v_sub_f32 v49, 0, v49
s_branch K2_nosync
""")
    for e in check(sl.lines + sl.lines, "slow"): print(e)
    a.lines += sl.lines
    return a

def gen_k3():
    a = Asm()
    header(a, "oproj_kernel")
    a("""
s_cmp_ge_u32 s2, 256
s_cbranch_scc1 K3_end
s_load_dwordx2 s[4:5], s[0:1], 32
s_load_dwordx2 s[6:7], s[0:1], 72
s_load_dwordx2 s[36:37], s[0:1], 88
s_load_dwordx2 s[46:47], s[0:1], 104
""")
    decode_wg(a)
    VA, VB = 6, 11
    for i in range(5):
        a(f"""
v_add_u32 v16, {64*i}, v2
v_mul_u32_u24 v17, 52429, v16
v_lshrrev_b32 v17, 19, v17
v_mul_u32_u24 v18, 10, v17
v_sub_u32 v18, v16, v18
v_lshlrev_b32 v18, 4, v18
v_and_b32 v19, 7, v17
v_bfe_u32 v20, v17, 3, 1
v_mad_u32_u24 v19, v20, 20, v19
v_lshrrev_b32 v20, 4, v17
v_lshl_add_u32 v19, v20, 3, v19
v_mul_u32_u24 v19, 1280, v19
v_add_u32 v{VA+i}, v19, v18
v_lshrrev_b32 v19, 2, v17
v_mul_u32_u24 v19, 20, v19
v_and_b32 v20, 3, v17
v_add3_u32 v19, v19, v20, 16
v_mul_u32_u24 v19, 1280, v19
v_add_u32 v{VB+i}, v19, v18
""")
    a("""
v_and_b32 v3, 15, v2
v_lshrrev_b32 v4, 4, v2
v_lshlrev_b32 v5, 4, v2
s_waitcnt lgkmcnt(0)
""")
    srd(a, 8, 46, WS_SIZE)
    srd(a, 12, 36, 2048*1280)
    a(f"""
s_cmp_lt_u32 s20, 4
s_cselect_b32 s16, s4, s6
s_cselect_b32 s17, s5, s7
s_mov_b32 s18, 819200
s_mov_b32 s19, 0x00020000
s_lshl_b32 s26, s21, 3
s_and_b32 s27, s20, 6
s_add_u32 s26, s26, s27
s_mul_i32 s26, s26, 20480
s_and_b32 s25, s20, 1
s_lshl_b32 s27, s25, 11
s_add_u32 s26, s26, s27
s_add_u32 s26, s26, {WS_O}
s_and_b32 s27, s20, 2
s_mul_i32 s27, s27, {160*1280}
s_mul_i32 s28, s22, 160
s_add_u32 s27, s27, s28
s_lshr_b32 s28, s20, 1
s_mul_i32 s28, s28, {8*5120}
""")
    BF = 64
    AFb = [144, 164]
    ACC = 24
    def wdma(n):
        p, s_ = divmod(n, 5)
        vo = VB if s_ == 4 else VA
        goff = p*160*1280 + (0 if s_ == 4 else 40*s_*1280)
        a(f"s_add_u32 s33, s27, {goff}")
        for i in range(5):
            a(f"s_add_u32 s34, s28, {(n%8)*5120 + i*1024}")
            a(f"s_mov_b32 m0, s34")
            a("s_nop 0")
            a(f"buffer_load_dwordx4 v{vo+i}, s[16:19], s33 offen lds")
    def oload(n):
        a(f"s_add_u32 s33, s26, {n*4096}")
        for nt in range(2):
            a(f"buffer_load_dwordx4 {r(BF+8*n+4*nt,4)}, v5, s[8:11], s33 offen offset:{nt*1024}")
    def both(f0, f1, tag):
        a(f"s_cmp_eq_u32 s25, 0\ns_cbranch_scc0 K3_{tag}_1")
        f0()
        a(f"s_branch K3_{tag}_e\nK3_{tag}_1:")
        f1()
        a(f"K3_{tag}_e:")
    for u in range(4):
        both(lambda: wdma(2*u), lambda: wdma(2*u+1), f"d{u}")
        oload(2*u); oload(2*u+1)
    oload(8); oload(9)
    a("""
v_lshrrev_b32 v16, 2, v3
v_lshl_add_u32 v16, v4, 2, v16
v_mul_u32_u24 v16, 160, v16
v_and_b32 v17, 3, v3
v_lshlrev_b32 v17, 3, v17
v_add3_u32 v21, v16, v17, s28
""")
    for i in range(40): a(f"v_mov_b32 v{ACC+i}, 0")
    def aread(n):
        for mt in range(5):
            a(f"ds_read_b64_tr_b16 {r(AFb[n%2]+4*mt,2)}, v21 offset:{(n%8)*5120 + mt*32}")
            a(f"ds_read_b64_tr_b16 {r(AFb[n%2]+4*mt+2,2)}, v21 offset:{(n%8)*5120 + mt*32 + 2560}")
    def mm(n):
        for mt in range(5):
            for nt in range(2):
                c = ACC + 8*mt + 4*nt
                a(f"v_mfma_f32_16x16x32_bf16 {r(c,4)}, {r(AFb[n%2]+4*mt,4)}, {r(BF+8*n+4*nt,4)}, {r(c,4)}")
    for u in range(5):
        if u < 4: cnt = 40 - 9*(u+1) + (5 if u >= 2 else 0)
        else: cnt = 0
        a(f"s_waitcnt vmcnt({cnt})")
        a("s_barrier")
        if u == 1:
            both(lambda: wdma(8), lambda: wdma(9), "late")
        aread(2*u)
        a("s_waitcnt lgkmcnt(0)")
        aread(2*u+1)
        mm(2*u)
        a("s_waitcnt lgkmcnt(0)")
        mm(2*u+1)
    RS = 336
    a("s_barrier")
    a(f"""
s_lshr_b32 s28, s20, 1
s_mul_i32 s28, s28, {64*RS}
s_mul_i32 s33, s25, {32*RS}
s_add_u32 s28, s28, s33
v_mul_u32_u24 v16, {RS}, v3
v_lshl_add_u32 v16, v4, 4, v16
v_add_u32 v16, s28, v16
s_nop 4
""")
    for mt in range(5):
        for nt in range(2):
            a(f"ds_write_b128 v16, {r(ACC+8*mt+4*nt,4)} offset:{nt*16*RS + mt*64}")
    a(f"""
s_mul_i32 s26, s21, {64*1280}
s_mul_i32 s27, s22, 160
s_add_u32 s26, s26, s27
v_mov_b32 v22, v0
s_waitcnt lgkmcnt(0)
s_barrier
K3_fin:
v_mul_u32_u24 v17, 52429, v22
v_lshrrev_b32 v17, 19, v17
v_mul_u32_u24 v18, 10, v17
v_sub_u32 v18, v22, v18
v_mul_u32_u24 v19, {RS}, v17
v_lshl_add_u32 v19, v18, 5, v19
v_mul_u32_u24 v20, 1280, v17
v_lshl_add_u32 v20, v18, 4, v20
""")
    for kq in range(3):
        a(f"ds_read_b128 {r(64+8*kq,4)}, v19 offset:{kq*64*RS}")
        a(f"ds_read_b128 {r(68+8*kq,4)}, v19 offset:{kq*64*RS+16}")
    a(f"ds_read_b128 {r(88,4)}, v19 offset:{3*64*RS}")
    a(f"ds_read_b128 {r(92,4)}, v19 offset:{3*64*RS+16}")
    a("s_waitcnt lgkmcnt(0)")
    for i in range(8):
        a(f"v_add_f32 v{64+i}, v{64+i}, v{72+i}")
        a(f"v_add_f32 v{80+i}, v{80+i}, v{88+i}")
    for i in range(8):
        a(f"v_add_f32 v{64+i}, v{64+i}, v{80+i}")
    for i in range(4):
        a(f"v_cvt_pk_bf16_f32 v{96+i}, v{64+2*i}, v{65+2*i}")
    a("""
buffer_store_dwordx4 v[96:99], v20, s[12:15], s26 offen
s_cmp_ge_u32 s20, 2
s_cbranch_scc1 K3_end
s_mov_b32 s20, 2
v_add_u32 v22, 512, v22
s_branch K3_fin
K3_end:
s_endpgm
""")
    for e in check(a.lines, "k3"): print(e)
    return a

def build(timing=False):
    k1, k2, k3 = gen_k1(), gen_k2(timing), gen_k3()
    head = open("cdna_kernels/%s.s.ref" % NAME).read().split("; Override launch")[0]
    out = head
    out += "; @launch kernel=kv_kernel grid=(256,1,1) block=(256,1,1) lds=51200\n"
    out += "; @launch kernel=attn_kernel grid=(256,1,1) block=(512,1,1) lds=163840\n"
    out += "; @launch kernel=oproj_kernel grid=(256,1,1) block=(512,1,1) lds=163840\n"
    out += '.amdgcn_target "amdgcn-amd-amdhsa--gfx950"\n.text\n'
    out += k1.text() + k2.text() + k3.text()
    out += '.section .rodata,"a"\n'
    out += ".p2align 6" + kd("kv_kernel", 232, 64) + ".p2align 6" + kd("attn_kernel", 256, 80) + ".p2align 6" + kd("oproj_kernel", 184, 64)
    return out

if __name__ == "__main__":
    open("cdna_kernels/%s.s" % NAME, "w").write(build(False))
    open("v1t.s", "w").write(build(True))
```

```python
import sys, struct, math
from asmlib import Asm, check

NAME = "gated_mix__grouped_kv_mqa__grouped_kv_mqa__prompt"
KVIMG = 163840
WS_KMAX = 0x50000
WS_GATE = 0x51000
WS_FLAG = 0x58000
WS_GO = 0x5c000
WS_O = 0x60000
WS_WF = WS_O + 32*8*20480
WS_SIZE = WS_WF + 64*25600
WS_TIME = 0x780000
f2u = lambda x: struct.unpack("<I", struct.pack("<f", x))[0]
CSCALE = f2u(math.log2(math.e)/math.sqrt(20.0))
LOG2E = f2u(math.log2(math.e))

def r(b, n): return f"v[{b}:{b+n-1}]"

XB = 0
SB = 81920
SLOT = [SB, SB+20480, SB+40960, SB+61440]
WKB = SLOT[2]
GB = WKB + 25600
YB = SLOT[2]
RB = 153600
KMX = SLOT[2] + 32768
S = [16, 48]
O = [80, 96]
NEGM = 112
Q16 = [144, 148]
Q4 = 152
IDX = 154
K16 = [156, 160]
K4 = 164
V = [[172, 176], [180, 184]]
AK, AV = 188, 189
WPF = 192

class P:
    sched = [2,'Sp','W',3,'T',8,'S0',2,'LV',3,'S1',2,'LK',2,'M0',4,'S2',3,'M1',3]
    prio_switch = 12
    sync_iter = 3
    sync2 = 7
    pf_a = 6
    pf_b = 5
    timing = False
    spin_max = 200000
    lead = 4
    probe_sleep = 2
    probe = [(0,4),(2,4),(0,0),(0,1),(0,2),(0,3)]
    fast = 1
    o2 = True
    pi = 5
    mo = [0,4,1,5,2,6,3,7]
    tp = [3,3,3,3,3,1,0,0]
    xr = True
    ocopy = True
    diag = None
    trper = 2
    wpre = 0
    restore = False
    codepf = True
    o_sc = ''
    wbl2 = False
    p1first = True
    mprio = True
    wspread = True
    pretouch = 1
    fast_sc = ''
    out_sc = ''
    rot = 1
    pc = 7
    kve = [3, 2]
    fc = 1
    early1 = True
    chk = 1
    s1u = 0
    bprio = 1
    bprio2 = 3
    lastfirst = True
    chkcnt = 0
    atom_first = False
    psleep = 2

def step(a, j, sched, last=False, extra=None):
    X = S[j % 2]; Y = S[(j+1) % 2]
    Vc = V[j % 2]; Vp = V[(j+1) % 2]
    jn = (j + 1) % 4
    k4 = K4 + (2 if jn >= 2 else 0)
    abid = jn & 1
    def e(i): a(f"v_exp_f32 v{X+i}, v{X+i}")
    ops = {
      'W': lambda: a("s_waitcnt lgkmcnt(0)"),
      'Sp': lambda: a(f"v_smfmac_f32_32x32x32_bf16 {r(O[1],16)}, {r(Vp[1],4)}, {r(Y+24,8)}, v{IDX}"),
      'T': lambda: a(f"v_mfma_f32_32x32x4_2b_bf16 {r(Y,32)}, {r(k4,2)}, {r(Q4,2)}, {r(NEGM,32)} cbsz:1 abid:{abid}"),
      'S0': lambda: a(f"v_smfmac_f32_32x32x32_bf16 {r(O[0],16)}, {r(Vc[0],4)}, {r(X,8)}, v{IDX}"),
      'S1': lambda: a(f"v_smfmac_f32_32x32x32_bf16 {r(O[0],16)}, {r(Vc[1],4)}, {r(X+8,8)}, v{IDX}"),
      'S2': lambda: a(f"v_smfmac_f32_32x32x32_bf16 {r(O[1],16)}, {r(Vc[0],4)}, {r(X+16,8)}, v{IDX}"),
      'M0': lambda: a(f"v_mfma_f32_32x32x16_bf16 {r(Y,16)}, {r(K16[(j+1)%2],4)}, {r(Q16[0],4)}, {r(Y,16)}"),
      'M1': lambda: a(f"v_mfma_f32_32x32x16_bf16 {r(Y+16,16)}, {r(K16[(j+1)%2],4)}, {r(Q16[1],4)}, {r(Y+16,16)}"),
    }
    def LV():
        voff = 5120 + (j+1)*1280 if j < 3 else 10240 + 5120
        a("s_mov_b64 exec, s[30:31]")
        a(f"ds_read_b128 {r(Vp[0],4)}, v{AV} offset:{voff}")
        a(f"ds_read_b128 {r(Vp[1],4)}, v{AV} offset:{voff+640}")
        a("s_mov_b64 exec, -1")
    def LK():
        koff = (j+2)*1024 if j < 2 else 10240 + (j-2)*1024
        a(f"ds_read_b128 {r(K16[j%2],4)}, v{AK} offset:{koff}")
        if j == 2:
            a(f"ds_read_b128 {r(K4,4)}, v{AK} offset:{10240+4096}")
        if j == 3:
            a(f"v_add_u32 v{AK}, s29, v{AK}")
            a(f"v_add_u32 v{AV}, s29, v{AV}")
    ops['LV'] = LV; ops['LK'] = LK
    ei = 0
    for tok in sched:
        if isinstance(tok, int):
            for _ in range(tok):
                e(ei); ei += 1
                if extra and ei in extra: extra[ei]()
        elif last and ((j == 3 and tok in ('T','M0','M1','LV','LK')) or (j == 2 and tok == 'LK')): pass
        else: ops[tok]()
    assert ei == 32

NST = 12
MODES = {
 'all': [0,2,'c0','c7','c9',6,5,7,8,9,10,11],
 'post': [0,7,8,'e1',9,10,'e3','e4','e5','e6',11,'zz'],
 'pre': [0,2,'x0','c0','c1','c2','c4','c6','c7','c9',6,7],
 'it': [0,'c1','c2','c3','c4','c5','c6','w7','c7','c8','c9',7],
 'i8': [0,'c7','c8','y0','y1','y2','y3','y4','c9',6,5,7],
 'ev': [0,7,'v0','v1','v2','v3','v4','v5','v6',8,9,11],
 'bq': [0,6,'b0','b1','q1','q4','q7','b2','b3','b4',7,8],
}
def stamp(a, i):
    if P.timing and i in MODES[P.timing]:
        k = MODES[P.timing].index(i)
        a(f"s_memtime s[{76+2*k}:{77+2*k}]")

def srd(a, d, lo, size):
    a(f"s_mov_b32 s{d}, s{lo}\ns_mov_b32 s{d+1}, s{lo+1}\ns_mov_b32 s{d+2}, {size}\ns_mov_b32 s{d+3}, 0x00020000")

def wo_load(a, n, dst):
    if n % 4 == 0: a(f"s_add_u32 s33, s27, {(n//4)*4096}")
    a(f"buffer_load_dwordx4 {r(dst,4)}, v1, s[8:11], s33 offen offset:{(n%4)*1024} sc1")

def kvdma(a, voff):
    a(f"""
s_mov_b32 m0, s33
s_add_u32 s34, s33, s3
s_cmp_ge_u32 s34, {KVIMG}
s_cselect_b32 s28, {KVIMG}, 0
s_sub_u32 s34, s34, s28
s_add_u32 s34, s34, s26
buffer_load_dwordx4 v{voff}, s[8:11], s34 offen sc1 lds
""")

def gen():
    a = Asm()
    name = NAME + "_kernel"
    a(f""".globl {name}
.p2align 8
.type {name},@function
{name}:
s_cmp_ge_u32 s2, 256
s_cbranch_scc1 L_end
s_load_dwordx16 s[36:51], s[0:1], 0
s_load_dwordx8 s[52:59], s[0:1], 64
s_load_dwordx4 s[60:63], s[0:1], 96
""")
    if P.timing or P.diag: a("s_memrealtime s[100:101]")
    stamp(a, 0)
    CODEPF = "" if not P.codepf else f"""
s_cmp_lg_u32 s20, 7
s_cbranch_scc1 L_ncp
s_getpc_b64 s[6:7]
L_pc:
s_lshr_b32 s33, s2, 3
s_lshl_b32 s33, s33, 10
s_min_u32 s33, s33, L_codeend-L_pc-1024
s_add_u32 s6, s6, s33
s_addc_u32 s7, s7, 0
global_load_dwordx4 v[248:251], v1, s[6:7]
L_ncp:
"""
    a(f"""
v_lshrrev_b32 v1, 6, v0
v_and_b32 v2, 63, v0
s_and_b32 s21, s2, 7
v_readfirstlane_b32 s20, v1
s_lshr_b32 s25, s2, 6
s_lshl_b32 s22, s25, 3
s_add_u32 s21, s21, s22
s_bfe_u32 s22, s2, 0x30003
s_lshr_b32 s23, s22, 2
s_and_b32 s24, s22, 3
{'s_mov_b32 s25, s22' if P.xr else 's_add_u32 s25, s25, s22'}
s_mul_i32 s26, s25, 52
s_lshr_b32 s26, s26, 8
s_mul_i32 s26, s26, 5
s_sub_u32 s25, s25, s26
v_lshlrev_b32 v1, 4, v2
s_lshl_b32 s26, s20, 2
v_lshrrev_b32 v11, 4, v2
v_add_u32 v11, s26, v11
v_xor_b32 v12, v11, v2
v_and_b32 v12, 15, v12
v_mul_u32_u24 v11, 1280, v11
v_lshl_add_u32 v10, v12, 4, v11
s_lshl_b32 s26, s20, 10
s_mul_i32 s5, s25, 5120
s_lshl_b32 s3, s25, 8
s_add_u32 s33, s3, s26
s_sub_u32 s33, s33, 1024
v_add_u32 v14, s33, v1
v_subrev_u32 v15, 1280, v14
v_min_u32 v14, v14, v15
s_and_b32 s32, s24, 1
s_mul_i32 s27, s21, {64*1280}
s_mul_i32 s33, s32, {32*1280}
s_add_u32 s27, s27, s33
s_lshl_b32 s29, s32, 13
s_add_u32 s29, s29, s26
s_mov_b32 s14, {2048*1280}
s_mov_b32 s15, 0x00020000
s_mov_b32 s66, 25600
s_mov_b32 s67, 0x00020000
s_mov_b32 s18, 819200
s_mov_b32 s19, 0x00020000
s_mov_b32 s70, 1280
s_mov_b32 s71, 0x00020000
v_and_b32 v3, 31, v2
v_lshrrev_b32 v4, 5, v2
{CODEPF}
s_waitcnt lgkmcnt(0)
s_mov_b32 s12, s36
s_mov_b32 s13, s37
""")
    def xload(i):
        a(f"""
s_add_u32 m0, s29, {i*16384}
s_add_u32 s33, s3, s27
buffer_load_dwordx4 v10, s[12:15], s33 offen lds
s_add_u32 s3, s3, 256
s_cmp_eq_u32 s3, 1280
s_cselect_b32 s3, 0, s3
""")
    def wkload():
        a(f"""
s_add_u32 m0, s31, {WKB}
s_add_u32 s33, s31, s5
s_cmp_ge_u32 s33, 25600
s_cselect_b32 s30, 25600, 0
s_sub_u32 s33, s33, s30
buffer_load_dwordx4 v1, s[64:67], s33 offen lds
""")
    def wk(i):
        a(f"s_add_u32 s31, s26, {i*8192}")
        wkload()
    def wq_set(a, c):
        a(f"""
s_xor_b32 s34, s{56 if c < 8 else 57}, {c}
s_add_u32 s34, s34, s53
s_cmp_ge_u32 s34, 10
s_cselect_b32 s33, 10, 0
s_sub_u32 s34, s34, s33
s_mul_i32 s34, s34, {64*1280}
s_add_u32 s34, s34, s35
""")
    def wq5(a, ldsbase, c):
        wq_set(a, c)
        for i in range(5):
            a(f"s_add_u32 m0, s28, {ldsbase + i*960}")
            a("s_nop 0")
            a(f"buffer_load_dwordx4 v5, s[16:19], s34 offen offset:{64*i} lds")
    xload(0)
    a("""
s_cmp_eq_u32 s23, 0
s_cselect_b32 s16, s38, s48
s_cselect_b32 s17, s39, s49
s_cselect_b32 s40, s40, s50
s_cselect_b32 s41, s41, s51
s_cselect_b32 s42, s42, s52
s_cselect_b32 s43, s43, s53
s_cmp_lt_u32 s24, 2
s_cselect_b32 s64, s40, s42
s_cselect_b32 s65, s41, s43
s_mov_b32 s68, s56
s_mov_b32 s69, s57
""")
    wk(0)
    a(f"""
s_cmp_ge_u32 s20, 3
s_cbranch_scc1 L_noopt
s_cmp_eq_u32 s20, 0
s_cbranch_scc1 L_opt0
s_add_u32 m0, s26, {GB-1024}
s_nop 0
buffer_load_dwordx4 v14, s[68:71], 0 offen lds
s_branch L_noopt
L_opt0:
s_movk_i32 s31, {24*1024}
""")
    wkload()
    a("L_noopt:")
    xload(1); wk(1); xload(2)
    AF = [156, 228]; YF = [196, 212]; XK = [48, 80, 112]; XA = 144; ACC = [16, 32]; TA = 192; TY = 244
    def xfrag(c, k): return (XK[c >> 1] + 16*(c & 1) if c < 6 else (48, 64, 112, 128)[c-6]) + 4*k
    CSL = [SLOT[c % 4] for c in range(10)]
    KX = 200; KW = 204; KG = 205; KI = 206; KGp = 207; KACC, GACC = 208, 212; FB = [112, 216]
    srd(a, 8, 62, 0x1000000 if P.timing else WS_SIZE)
    srd(a, 72, 60, 256)
    a(f"""
s_lshl_b32 s51, s23, 11
s_add_u32 s51, s51, {WS_GO}
s_cmp_lg_u32 s20, 4
s_cbranch_scc1 L_nsnap
buffer_load_dword v252, v1, s[8:11], s51 offen sc1
buffer_load_dword v253, v1, s[8:11], s51 offen offset:1024 sc1
L_nsnap:
""")
    a(f"""
s_and_b32 s46, s20, 3
s_lshr_b32 s47, s20, 2
{'s_xor_b32 s47, s47, s32' if P.ocopy else ''}
""")
    def voffs(a, blk_rows, prrow, prcol):
        off = lambda p: prrow(p)*1280 + prcol(p)
        a(f"""
v_lshrrev_b32 v12, 4, v2
v_mul_u32_u24 v12, {blk_rows*1280}, v12
v_bfe_u32 v13, v2, 2, 2
v_mul_u32_u24 v13, 1280, v13
v_add_u32 v12, v12, v13
v_add_u32 v13, 1, v2
v_and_b32 v14, 1, v13
v_bfe_u32 v13, v13, 1, 1
v_mul_u32_u24 v14, {off(1)}, v14
v_mul_u32_u24 v13, {off(2)}, v13
v_add3_u32 v13, v13, v14, 64
v_add_u32 v9, v12, v13
""")
        for i in range(4):
            a(f"""
v_subrev_u32 v13, {i}, v2
v_bfe_u32 v14, v13, 1, 1
v_and_b32 v13, 3, v13
v_xor_b32 v13, v13, v14
v_lshl_add_u32 v13, v13, 4, v12
v_add_u32 v{5+i}, {off(i)}, v13
""")
    def traddr(a, dst, base_v, prv):
        a(f"""
v_bfe_u32 v12, v2, 2, 2
v_lshl_add_u32 v{base_v}, v12, 6, v{base_v}
v_and_b32 v12, 1, v2
v_lshlrev_b32 v12, 4, v12
v_bfe_u32 v14, v2, 1, 1
v_lshl_add_u32 v12, v14, 3, v12
v_bfe_u32 v14, v2, 4, 1
v_mad_u32_u24 v12, v14, 40, v12
v_lshrrev_b32 v15, 4, v12
v_and_b32 v12, 8, v12
v_cmp_eq_u32 vcc, 4, v15
v_lshrrev_b32 v14, 1, v15
v_xor_b32 v15, v14, v15
v_min_u32 v15, 3, v15
v_add_u32 v12, v{base_v}, v12
v_and_b32 v14, 1, v2
v_cmp_eq_u32 s[48:49], 1, v14
v_lshl_add_u32 v{base_v}, v14, 3, v{base_v}
""")
        for rho in range(2):
            prv(rho)
            a(f"""
v_add_u32 v14, v15, v13
v_and_b32 v14, 3, v14
v_lshl_add_u32 v{dst+rho}, v14, 4, v12
v_cndmask_b32 v14, v13, 4, vcc
v_lshl_add_u32 v{dst+rho}, v14, 10, v{dst+rho}
v_add_u32 v14, 3, v13
v_and_b32 v14, 3, v14
v_lshl_add_u32 v{dst+2+rho}, v14, 4, v{base_v}
v_cndmask_b32 v14, v13, 4, s[48:49]
v_lshl_add_u32 v{dst+2+rho}, v14, 10, v{dst+2+rho}
""")
    def xaddr(a, dst):
        a(f"""
s_lshl_b32 s33, s47, 13
v_and_b32 v14, 15, v3
v_lshlrev_b32 v15, 8, v3
v_add_u32 v15, s33, v15
v_xor_b32 v11, v4, v14
v_lshl_add_u32 v{dst}, v11, 4, v15
""")
        for s in range(1, 8): a(f"v_xor_b32 v{dst+s}, {s<<5}, v{dst}")
    def setup_att(a):
        a(f"""
v_mov_b32 v{AK}, v1
v_mov_b32 v{IDX}, 0xdddddddd
v_mul_u32_u24 v{AV}, 320, v4
v_lshl_add_u32 v{AV}, v3, 4, v{AV}
v_and_b32 v11, 27, v3
v_cmp_eq_u32 vcc, 24, v11
v_mov_b32 v13, 0x3f803f80
v_lshlrev_b32 v191, 2, v3
v_cndmask_b32 v13, 0, v13, vcc
""")
        for b in (V[0][0], V[0][1], V[1][0], V[1][1]):
            for i in range(4): a(f"v_mov_b32 v{b+i}, v13")
    a("""
v_lshrrev_b32 v12, 2, v2
v_mul_u32_u24 v12, 1280, v12
v_and_b32 v13, 3, v2
v_lshl_add_u32 v5, v13, 4, v12
""")
    a(f"""
s_mul_i32 s33, s46, {16*1280}
s_mul_i32 s34, s24, 320
s_add_u32 s35, s33, s34
s_lshl_b32 s53, s25, 1
s_lshr_b32 s56, s2, 6
{'' if P.xr else 's_mov_b32 s56, 0'}
s_and_b32 s57, s56, 1
s_mul_i32 s28, s46, 5120
""")
    xaddr(a, XA)
    a(f"s_lshl_b32 s33, s46, 5\ns_lshl_b32 s30, s57, 7\ns_or_b32 s33, s33, s30")
    for s in range(8): a(f"v_xor_b32 v{XA+s}, s33, v{XA+s}")
    a(f"""
v_lshlrev_b32 v11, 9, v4
v_bfe_u32 v12, v2, 2, 2
v_lshl_add_u32 v11, v12, 6, v11
v_add_u32 v11, {SB}, v11
v_and_b32 v13, 1, v2
v_lshlrev_b32 v12, 4, v13
v_bfe_u32 v14, v2, 1, 1
v_lshl_add_u32 v12, v14, 3, v12
v_bfe_u32 v14, v2, 4, 1
v_mad_u32_u24 v12, v14, 40, v12
s_mul_i32 s33, s46, 80
v_add_u32 v12, s33, v12
v_lshrrev_b32 v15, 6, v12
v_and_b32 v12, 63, v12
v_lshl_add_u32 v12, v15, 10, v12
v_add_u32 v12, v11, v12
v_xor_b32 v14, v13, v14
v_lshl_add_u32 v11, v14, 18, v11
v_bfe_u32 v13, v2, 1, 1
v_mul_u32_u24 v13, 40, v13
v_add3_u32 v13, v13, 32, s33
v_lshrrev_b32 v15, 6, v13
v_and_b32 v13, 63, v13
v_lshl_add_u32 v13, v15, 10, v13
v_add_u32 v153, v11, v13
""")
    for k in range(4):
        a(f"s_xor_b32 s33, s46, {k}\ns_mul_i32 s33, s33, 5120\nv_add_u32 v{TA+k}, s33, v12")
    a(f"""
v_and_b32 v{KI}, 15, v2
v_lshrrev_b32 v{KGp}, 4, v2
s_lshl_b32 s32, s32, 1
s_and_b32 s33, s20, 1
s_add_u32 s32, s32, s33
s_lshl_b32 s33, s32, 12
v_lshlrev_b32 v11, 8, v{KI}
v_add_u32 v11, s33, v11
v_xor_b32 v12, v{KGp}, v{KI}
v_lshl_add_u32 v{KX}, v12, 4, v11
v_xor_b32 v{KX+1}, 64, v{KX}
v_xor_b32 v{KX+2}, 128, v{KX}
v_xor_b32 v{KX+3}, 192, v{KX}
v_lshrrev_b32 v11, 2, v{KI}
v_lshl_add_u32 v11, v{KGp}, 3, v11
v_mul_u32_u24 v11, 40, v11
v_and_b32 v12, 3, v{KI}
v_lshlrev_b32 v12, 3, v12
s_bitcmp1_b32 s20, 1
s_cbranch_scc0 L_kvc0
v_mov_b32 v12, 32
L_kvc0:
s_mov_b32 s33, {WKB}
v_add3_u32 v{KW}, v11, v12, s33
v_lshlrev_b32 v{KG}, 4, v{KGp}
v_add_u32 v{KG}, {GB}, v{KG}
s_lshl_b32 s32, s32, 4
s_lshl_b32 s33, s21, 6
s_add_u32 s32, s32, s33
""")
    for i in range(8): a(f"v_mov_b32 v{KACC+i}, 0")
    stamp(a, 'p0')
    a("s_barrier")
    wk(2); xload(3); xload(4)
    a(f"""
s_xor_b32 s29, s29, 8192
s_bitcmp1_b32 s24, 0
s_cselect_b32 s33, {(-32*1280) & 0xffffffff}, 0
s_cselect_b32 s30, 0, {32*1280}
s_add_u32 s27, s27, s33
s_add_u32 s27, s27, s30
""")
    for i in range(20): a(f"v_mov_b32 v{16+i}, 0")
    setup_att(a)
    a("s_barrier")
    for i in range(5): xload(i)
    a(f"""
s_lshr_b32 s30, s32, 7
s_mul_i32 s30, s30, 10240
s_mul_i32 s26, s23, {KVIMG}
s_add_u32 s30, s30, s26
s_lshr_b32 s3, s2, 6
s_lshl_b32 s3, s3, 2
s_add_u32 s3, s3, s24
s_mul_i32 s3, s3, 11
s_lshr_b32 s3, s3, 4
s_mul_i32 s3, s3, 10240
s_lshl_b32 s27, s22, 3
s_add_u32 s27, s27, s20
s_mul_i32 s27, s27, 25600
s_add_u32 s27, s27, {WS_WF}
s_movk_i32 s29, 10240
s_lshl_b32 s50, s21, 2
s_add_u32 s50, s50, s24
""")
    stamp(a, 1)
    a(f"s_waitcnt vmcnt({10 if P.wpre else 5})")
    a("s_barrier")
    stamp(a, 2)
    a("s_cmp_lt_u32 s20, 4\ns_cbranch_scc1 L_oload\ns_setprio 1")
    def kv_chain(kind):
        def rd(g):
            b = FB[g % 2]
            for u in range(2):
                ks = 2*g + u
                if ks == 16:
                    for s in range(4): a(f"v_add_u32 v{KX+s}, 0x10000, v{KX+s}")
                a(f"ds_read_b128 {r(b+4*u,4)}, v{KX+(ks&3)} offset:{((ks>>2)&3)*16384}")
                a(f"ds_read_b64_tr_b16 {r(b+8+4*u,2)}, v{KW} offset:{ks*1280}")
                a(f"ds_read_b64_tr_b16 {r(b+10+4*u,2)}, v{KW} offset:{ks*1280+160}")
                if kind == 'G': a(f"ds_read_b128 {r(b+16+4*u,4)}, v{KG} offset:{ks*64}")
        n = 8 if kind == 'G' else 6
        rd(0)
        for g in range(10):
            if g < 9:
                if kind == 'G': a(f"s_waitcnt lgkmcnt(7)")
                rd(g+1)
                a(f"s_waitcnt lgkmcnt({n})")
            else: a("s_waitcnt lgkmcnt(0)")
            b = FB[g % 2]
            for u in range(2):
                if kind == 'K':
                    a(f"v_mfma_f32_16x16x32_bf16 {r(KACC,4)}, {r(b+8+4*u,4)}, {r(b+4*u,4)}, {r(KACC,4)}")
                else:
                    a(f"v_mfma_f32_16x16x32_bf16 {r(KACC,4)}, {r(b+4*u,4)}, {r(b+8+4*u,4)}, {r(KACC,4)}")
                    if kind == 'G': a(f"v_mfma_f32_16x16x32_bf16 {r(GACC,4)}, {r(b+4*u,4)}, {r(b+16+4*u,4)}, {r(GACC,4)}")
    a("s_cmp_ge_u32 s24, 2\ns_cbranch_scc1 L_kvV")
    kv_chain('K')
    a(f"""
s_mov_b32 s33, {CSCALE}
s_waitcnt vmcnt(0)
s_nop 6
v_mul_f32 v208, s33, v208
v_mul_f32 v209, s33, v209
v_mul_f32 v210, s33, v210
v_mul_f32 v211, s33, v211
v_cvt_pk_bf16_f32 v240, v208, v209
v_cvt_pk_bf16_f32 v241, v210, v211
v_mul_f32 v242, v208, v208
v_fmac_f32 v242, v209, v209
v_fmac_f32 v242, v210, v210
v_fmac_f32 v242, v211, v211
s_bitcmp1_b32 s20, 1
s_cbranch_scc1 L_kvK4
s_bfe_u32 s31, s32, 0x20005
s_lshl_b32 s31, s31, 10
s_add_u32 s30, s30, s31
s_and_b32 s31, s32, 31
s_lshl_b32 s31, s31, 4
s_add_u32 s30, s30, s31
v_mov_b32 v248, v240
v_mov_b32 v249, v241
v_mov_b32 v250, v240
v_mov_b32 v251, v241
v_lshrrev_b32 v243, 1, v207
v_lshlrev_b32 v243, 9, v243
v_permlane16_swap_b32 v248, v250
v_permlane16_swap_b32 v249, v251
v_lshl_add_u32 v243, v206, 4, v243
s_mov_b32 exec_lo, 0xffff
s_mov_b32 exec_hi, 0xffff
buffer_store_dwordx4 v[248:251], v243, s[8:11], s30 offen sc1
s_mov_b64 exec, -1
v_mov_b32 v244, v242
s_nop 1
v_permlane16_swap_b32 v242, v244
v_add_f32 v242, v242, v244
v_mov_b32 v244, v242
s_nop 1
v_permlane32_swap_b32 v242, v244
v_add_f32 v242, v242, v244
s_mov_b32 s30, 0
s_branch L_kvmax
L_kvK4:
s_and_b32 s31, s32, 63
s_lshl_b32 s31, s31, 4
s_add_u32 s30, s30, s31
s_bfe_u32 s31, s32, 0x10006
s_lshl_b32 s31, s31, 3
s_add_u32 s30, s30, s31
s_add_u32 s30, s30, 4096
v_lshlrev_b32 v243, 4, v206
s_mov_b64 exec, 0xffff
buffer_store_dwordx2 v[240:241], v243, s[8:11], s30 offen sc1
s_mov_b64 exec, -1
s_movk_i32 s30, 512
L_kvmax:
s_nop 1
v_max_f32_dpp v242, v242, v242 row_ror:8 row_mask:0xf bank_mask:0xf
s_nop 1
v_max_f32_dpp v242, v242, v242 row_ror:4 row_mask:0xf bank_mask:0xf
s_nop 1
v_max_f32_dpp v242, v242, v242 row_ror:2 row_mask:0xf bank_mask:0xf
s_nop 1
v_max_f32_dpp v242, v242, v242 row_ror:1 row_mask:0xf bank_mask:0xf
s_lshl_b32 s31, s23, 10
s_add_u32 s31, s31, s30
s_lshr_b32 s30, s32, 4
s_lshl_b32 s30, s30, 2
s_add_u32 s31, s31, s30
s_add_u32 s31, s31, {WS_KMAX}
v_mov_b32 v243, 0
s_mov_b64 exec, 1
buffer_store_dword v242, v243, s[8:11], s31 offen sc1
s_branch L_kvend
L_kvV:
s_bitcmp1_b32 s20, 1
s_cbranch_scc1 L_kvG
""")
    kv_chain('V')
    a("s_branch L_kvV2\nL_kvG:")
    kv_chain('G')
    a(f"""
s_mov_b32 s33, {LOG2E}
s_cmp_eq_u32 s23, 0
s_cselect_b32 s31, 0x80000000, 0
s_xor_b32 s33, s33, s31
s_lshl_b32 s31, s23, 13
s_lshl_b32 s4, s32, 2
s_add_u32 s31, s31, s4
s_add_u32 s31, s31, {WS_GATE}
""")
    for i in range(4): a(f"v_mul_f32 v{212+i}, s33, v{212+i}")
    for i in range(4): a(f"v_exp_f32 v{212+i}, v{212+i}")
    for i in range(4): a(f"v_add_f32 v{212+i}, 1.0, v{212+i}")
    for i in range(4): a(f"v_rcp_f32 v{212+i}, v{212+i}")
    a(f"""
v_lshlrev_b32 v243, 4, v207
s_waitcnt vmcnt(0)
s_mov_b32 exec_lo, 0x00010001
s_mov_b32 exec_hi, 0x00010001
buffer_store_dwordx4 v[212:215], v243, s[8:11], s31 offen sc1
s_mov_b64 exec, -1
s_branch L_kvV3
L_kvV2:
s_waitcnt vmcnt(0)
L_kvV3:
s_bfe_u32 s31, s32, 0x30004
s_mul_i32 s31, s31, 640
s_add_u32 s30, s30, s31
s_add_u32 s30, s30, 5120
v_lshrrev_b32 v243, 1, v207
v_mul_u32_u24 v243, 320, v243
v_lshl_add_u32 v243, v206, 4, v243
s_nop 1
v_cvt_pk_bf16_f32 v248, v208, v209
v_cvt_pk_bf16_f32 v249, v210, v211
v_cvt_pk_bf16_f32 v250, v208, v209
v_cvt_pk_bf16_f32 v251, v210, v211
s_bitcmp1_b32 s20, 1
s_cselect_b32 s31, 256, 0
s_cselect_b32 s33, 15, 0xffff
v_permlane16_swap_b32 v248, v250
v_permlane16_swap_b32 v249, v251
s_add_u32 s30, s30, s31
s_mov_b32 exec_lo, s33
s_mov_b32 exec_hi, s33
buffer_store_dwordx4 v[248:251], v243, s[8:11], s30 offen sc1
L_kvend:
s_cmp_lg_u32 s20, 4
s_cbranch_scc1 L_kvnc
s_lshl_b32 s30, s21, 9
s_add_u32 s30, s30, {WS_FLAG}
s_lshl_b32 s31, s22, 5
s_add_u32 s33, s30, s31
s_lshl_b32 s31, s22, 2
s_add_u32 s30, s30, s31
s_getreg_b32 s31, hwreg(HW_REG_XCC_ID, 0, 4)
s_mov_b64 exec, 3
v_mov_b32 v244, s31
buffer_store_dwordx4 v[16:19], v1, s[8:11], s33 offen offset:256 sc1
s_mov_b64 exec, 1
buffer_store_dword v244, v1, s[8:11], s30 offen sc1
L_kvnc:
s_mov_b64 exec, -1
""")
    def xread(c):
        for k in range(4):
            a(f"ds_read_b128 {r(xfrag(c,k),4)}, v{XA+4*(c&1)+k} offset:{((c>>1)&2)*16384}")
    def xcopy():
        def xadd(expr):
            a(expr)
            for s in range(8): a(f"v_add_u32 v{XA+s}, s33, v{XA+s}")
        xadd("s_lshr_b32 s30, s56, 1\ns_lshl_b32 s30, s30, 14\ns_mov_b32 s33, s30")
        xread(0); xread(1); xread(4)
        a("s_waitcnt lgkmcnt(8)")
        xread(5)
        xadd("s_lshl_b32 s33, s30, 1\ns_sub_u32 s33, 16384, s33")
        a("s_waitcnt lgkmcnt(4)")
        xread(2); xread(3)
        a("s_waitcnt lgkmcnt(4)")
        for i in range(4): a(f"s_xor_b32 s33, s46, {i}\ns_mul_i32 s33, s33, 5120\nv_add_u32 v{TY+i}, s33, v153")
    a("s_branch L_q0\nL_oload:")
    if not P.wpre:
        wq5(a, SLOT[0], 0)
        if P.early1: wq5(a, SLOT[1], 1)
    if P.ocopy: xcopy()
    a(f"s_waitcnt vmcnt({5 if (P.early1 or P.wpre) else 0})\nL_q0:")
    stamp(a, 'x0')
    def toff(c): return CSL[c] - SB if CSL[c] >= SB else CSL[c]
    def trread(c):
        o = toff(c)
        L = []
        for k in range(4):
            L.append(f"ds_read_b64_tr_b16 {r(AF[c%2]+4*k,2)}, v{TA+k} offset:{o}")
            L.append(f"ds_read_b64_tr_b16 {r(AF[c%2]+4*k+2,2)}, v{TA+k} offset:{o + 256}")
            L.append(f"ds_read_b64_tr_b16 {r(YF[c%2]+4*k,2)}, v{TY+k} offset:{o}")
            L.append(f"ds_read_b64_tr_b16 {r(YF[c%2]+4*k+2,2)}, v{TY+k} offset:{o + 256}")
        return L
    def xread(c):
        for k in range(4):
            a(f"ds_read_b128 {r(xfrag(c,k),4)}, v{XA+4*(c&1)+k} offset:{((c>>1)&2)*16384}")
    def mm(c, k):
        if c < 9: k = P.mo[k]
        if k < 4: a(f"v_mfma_f32_32x32x16_bf16 {r(ACC[0],16)}, {r(AF[c%2]+4*k,4)}, {r(xfrag(c,k),4)}, {r(ACC[0],16)}")
        else: a(f"v_mfma_f32_16x16x32_bf16 {r(ACC[1],4)}, {r(YF[c%2]+4*(k-4),4)}, {r(xfrag(c,k-4),4)}, {r(ACC[1],4)}")
    a("s_cmp_lt_u32 s20, 4\ns_cselect_b64 vcc, -1, 0\nv_mov_b32 v155, 0\ns_mov_b32 s52, 0")
    PC = P.pc; KVE = P.kve; NKE = sum(KVE)
    def later(c): return 0 if c <= PC else 1 + sum(KVE[:c-PC])
    def pollissue():
        a("buffer_load_dword v254, v1, s[8:11], s51 offen sc1\nbuffer_load_dword v255, v1, s[8:11], s51 offen offset:1024 sc1")
    WN = {1: 5, 2: 5, 3: 5, 4: 5, 5: 5, 6: 5, 7: 5, 8: 0, 9: 0}
    for c in range(10):
        own = "s_cbranch_vccnz" if c % 2 == 0 else "s_cbranch_vccz"
        if c > 0:
            a("s_waitcnt lgkmcnt(0)")
            if c == 9: stamp(a, 'y3')
            if c == 1 and P.o2: a("s_waitcnt vmcnt(10)\ns_cbranch_vccnz L_qw1\ns_waitcnt vmcnt(0)\nL_qw1:")
            elif c == 2 and P.o2: a("s_cbranch_vccz L_qw2\ns_waitcnt vmcnt(5)\nL_qw2:")
            elif c == 1: a("s_waitcnt vmcnt(5)")
            elif c == 2: a(f"{own} L_qw{c}\ns_waitcnt vmcnt(6)\ns_cmp_eq_u32 s20, 4\ns_cbranch_scc1 L_qw{c}\ns_waitcnt vmcnt(5)\nL_qw{c}:")
            else: a(f"{own} L_qw{c}\ns_waitcnt vmcnt({WN[c] + later(c)})\nL_qw{c}:")
        if c == PC: stamp(a, 'w7')
        if c == 9: stamp(a, 'y4')
        if c == PC:
            a(f"""
s_cmp_lg_u32 s20, 4
s_cbranch_scc1 L_pdone
s_mov_b32 s30, 0
s_lshl_b32 s31, s23, 7
s_waitcnt vmcnt({5 if P.pi == 5 else 0})
L_poll:
v_cmp_eq_u32 s[4:5], v254, v252
v_cmp_eq_u32 s[48:49], v255, v253
s_add_u32 s30, s30, 1
s_nop 0
s_or_b64 s[4:5], s[4:5], s[48:49]
s_cbranch_scc0 L_pdone
s_cmp_ge_u32 s30, {P.spin_max}
s_cbranch_scc1 L_pdone
s_cmp_lg_u32 s30, 1
s_cbranch_scc1 L_pna
v_mov_b32 v190, 1
s_mov_b32 s52, 1
s_mov_b64 exec, 1
buffer_atomic_add v190, v155, s[72:75], s31 offen
s_mov_b64 exec, -1
L_pna:
s_and_b32 s33, s30, 7
s_cbranch_scc1 L_pnc
buffer_load_dword v190, v155, s[72:75], s31 offen sc1
s_waitcnt vmcnt(0)
v_readfirstlane_b32 s33, v190
s_nop 3
s_cmp_ge_u32 s33, 128
s_cbranch_scc1 L_pdone
L_pnc:
s_sleep {P.psleep}
""")
            pollissue()
            a("s_waitcnt vmcnt(0)\ns_branch L_poll\nL_pdone:")
        a("s_barrier")
        stamp(a, f'c{c}')
        if c == 1:
            a(f"""
s_cmp_lg_u32 s20, 4
s_cbranch_scc1 L_nf
s_and_b32 s33, s50, 63
v_readlane_b32 s30, v252, s33
v_readlane_b32 s31, v253, s33
s_cmp_lt_u32 s50, 64
s_nop 2
s_cselect_b32 s30, s30, s31
s_add_u32 s30, s30, 1
v_mov_b32 v190, s30
s_lshl_b32 s33, s50, 4
s_add_u32 s33, s33, s51
s_mov_b64 exec, 1
buffer_store_dword v190, v155, s[8:11], s33 offen sc1
s_mov_b64 exec, -1
L_nf:
""")
        if c == P.pi:
            a("s_cmp_lg_u32 s20, 4\ns_cbranch_scc1 L_np"); pollissue(); a("L_np:")
        if c == 0:
            if P.ocopy:
                a("s_cbranch_vccnz L_i0o")
                if not P.o2: wq5(a, CSL[2], 2)
                xcopy()
                a("s_branch L_i0e\nL_i0o:")
                if P.o2: wq5(a, CSL[2], 2)
                wq5(a, CSL[3], 3)
                a("L_i0e:")
            else:
                def xadd(expr):
                    a(expr)
                    for s in range(8): a(f"v_add_u32 v{XA+s}, s33, v{XA+s}")
                xadd("s_lshr_b32 s30, s56, 1\ns_lshl_b32 s30, s30, 14\ns_mov_b32 s33, s30")
                xread(0); xread(1); xread(4)
                a("s_cbranch_vccnz L_i0o")
                wq5(a, CSL[2], 2)
                a("s_branch L_i0e\nL_i0o:")
                if not P.early1: wq5(a, CSL[1], 1)
                a("L_i0e:\ns_waitcnt lgkmcnt(0)")
                xread(5)
                xadd("s_lshl_b32 s33, s30, 1\ns_sub_u32 s33, 16384, s33")
                xread(2); xread(3)
                a("s_cbranch_vccz L_i0f")
                wq5(a, CSL[3], 3)
                a("L_i0f:\ns_waitcnt lgkmcnt(4)")
                xread(6); xread(7)
                xadd("s_add_u32 s33, s30, 49152")
                a("s_waitcnt lgkmcnt(4)")
            for i_, l in enumerate(trread(0)):
                if i_ == 8: a('s_waitcnt lgkmcnt(6)')
                a(l)
            continue
        if c == 9: break
        TL = trread(c)
        if c == PC:
            a(f"""
s_lshl_b32 s33, s23, 10
s_add_u32 s33, s33, {WS_KMAX}
buffer_load_dwordx4 v[12:15], v1, s[8:11], s33 offen sc1
s_lshl_b32 s7, s20, 10
s_add_u32 s6, s26, s3
s_add_u32 s6, s6, s7
""")
        ld = "s_cbranch_vccz" if c % 2 == 0 else "s_cbranch_vccnz"
        for i in range(8):
            mm(c-1, i)
            lo = sum(P.tp[:i]); hi = lo + P.tp[i]
            if lo <= 15 < hi + 0 or (hi > 15 and lo < 16 and lo > 0 and False): a('s_waitcnt lgkmcnt(8)')
            for l in TL[lo:hi]: a(l)
            if i == 6 and c in (3, 4, 7, 8):
                a("s_waitcnt lgkmcnt(8)")
                xread({3: 6, 4: 7, 7: 8, 8: 9}[c])
            if i == 7 and c == 4:
                a("s_lshr_b32 s33, s56, 1\ns_lshl_b32 s33, s33, 14\ns_add_u32 s33, s33, 49152")
                for s in range(8): a(f"v_add_u32 v{XA+s}, s33, v{XA+s}")
            if c <= 6 and i < 5:
                if i == 0: wq_set(a, c+3)
                a(f"{ld} L_qd{c}_{i}\ns_add_u32 m0, s28, {CSL[c+3] + i*960}\ns_nop 0\nbuffer_load_dwordx4 v5, s[16:19], s34 offen offset:{64*i} lds")
                a(f"L_qd{c}_{i}:")
            if c in (5, 6):
                for z in range(80 + 16*(c-5) + 2*i, 80 + 16*(c-5) + 2*i + 2): a(f"v_mov_b32 v{z}, 0")
            if PC <= c < PC + len(KVE) and i < KVE[c-PC]:
                a("s_mov_b32 m0, s7\ns_add_u32 s7, s7, 8192\nbuffer_load_dwordx4 v1, s[8:11], s6 offen sc1 lds\ns_add_u32 s6, s6, 8192")
    def kmred(n):
        L = [f"s_waitcnt vmcnt({n})", "v_max3_f32 v12, v12, v13, v14", "v_max_f32 v12, v12, v15"]
        for rr in (8, 4, 2, 1): L += ["s_nop 1", f"v_max_f32_dpp v12, v12, v12 row_ror:{rr} row_mask:0xf bank_mask:0xf"]
        L += ["v_mov_b32 v13, v12", "s_nop 1", "v_permlane16_swap_b32 v12, v13", "v_max_f32 v12, v12, v13", "v_mov_b32 v13, v12", "s_nop 1",
              "v_permlane32_swap_b32 v12, v13", "v_add_f32 v12, v12, v13", "v_sqrt_f32 v12, v12", "s_nop 0", "v_mul_f32 v12, 0xbf8147ae, v12"]
        return L
    firstreads = f"""
ds_read_b128 {r(K16[0],4)}, v{AK} offset:0
ds_read_b128 {r(K16[1],4)}, v{AK} offset:1024
ds_read_b128 {r(K4,4)}, v{AK} offset:4096
s_mov_b64 exec, s[30:31]
ds_read_b128 {r(V[0][0],4)}, v{AV} offset:5120
ds_read_b128 {r(V[0][1],4)}, v{AV} offset:5760
s_mov_b64 exec, -1
"""
    R9 = trread(9)
    def mm8(extra, n):
        L = kmred(n)
        for i in range(8):
            mm(8, i)
            if extra:
                if i == 3: a("s_waitcnt lgkmcnt(6)")
                for l in R9[4*i:4*i+4]: a(l)
            if i >= 5 or not extra:
                j = (i-5) if extra else None
                for l in (L[8*j:8*j+8] if extra else L[3*i:3*i+3]): a(l)
    a("s_mov_b32 s30, 0x000fffff\ns_mov_b32 s31, 0x000fffff\ns_cbranch_vccz L_bwave\ns_setprio 2")
    mm8(True, NKE)
    a("s_waitcnt vmcnt(0) lgkmcnt(0)\ns_barrier")
    stamp(a, 6)
    a("L_tJ:")
    for k in range(4):
        mm(9, k)
        if k == 0: a(firstreads)
        elif k < 3:
            for z in range(72 + 4*(k-1), 76 + 4*(k-1)): a(f"v_mov_b32 v{z}, 0")
    XF_ = []
    for t in range(2):
        for i in range(4): XF_.append(f"v_cvt_pk_bf16_f32 v{Q16[t]+i}, v{16+8*t+2*i}, v{17+8*t+2*i}")
    for t in range(2):
        XF_.append(f"v_mul_f32 v{68+t}, v{16+8*t}, v{16+8*t}")
        for i in range(1, 8): XF_.append(f"v_fmac_f32 v{68+t}, v{16+8*t+i}, v{16+8*t+i}")
    mm(9, 4); mm(9, 5); mm(9, 6); mm(9, 7); a("s_nop 7")
    for l in XF_: a(l)
    a("v_mov_b32 v48, v68\nv_mov_b32 v49, v69")
    stamp(a, 5)
    def qfin(a):
        a(f"""
v_cvt_pk_bf16_f32 v{Q4}, v32, v33
v_cvt_pk_bf16_f32 v{Q4+1}, v34, v35
v_mul_f32 v56, v32, v32
v_fmac_f32 v56, v33, v33
v_fmac_f32 v56, v34, v34
v_fmac_f32 v56, v35, v35
s_mov_b32 exec_hi, 0
v_add_f32 v48, v48, v56
s_mov_b64 exec, -1
s_mov_b32 exec_lo, 0
v_add_f32 v49, v49, v56
s_mov_b64 exec, -1
v_mov_b32 v50, v48
v_mov_b32 v51, v49
s_nop 0
v_permlane32_swap_b32 v48, v50
v_permlane32_swap_b32 v49, v51
v_add_f32 v48, v48, v50
v_add_f32 v49, v49, v51
v_sqrt_f32 v48, v48
v_sqrt_f32 v49, v49
v_mov_b32 v51, 0xc2200000
""")
    def bound(a):
        a("""
v_mul_f32 v48, v48, v12
v_mul_f32 v49, v49, v12
v_min_f32 v50, v48, v49
v_cmp_nge_f32 vcc, v50, v51
""")
    qfin(a)
    bound(a)
    ma = (1 << P.sync_iter) | (15 << P.pf_a) | (1 << P.prio_switch) | (1 << 15)
    mb = (15 << P.pf_b) | (1 << 15)
    assert P.sync_iter < P.pf_a and P.pf_a + 3 < P.prio_switch
    a(f"""
s_mov_b32 s35, {ma}
s_mov_b32 s32, {P.pf_a}
s_cmp_lt_u32 s20, 4
s_cbranch_scc0 L_bw2
s_cmp_lg_u64 vcc, 0
s_cbranch_scc1 L_aslow
L_go:
""")
    for i in range(0, 16, 2):
        a(f"v_pk_mov_b32 {r(NEGM+i,2)}, v[48:49], v[48:49] op_sel:[0,0]")
    for i in range(0, 16, 2):
        a(f"v_pk_mov_b32 {r(NEGM+16+i,2)}, v[48:49], v[48:49] op_sel:[1,1]")
    a(f"""
s_waitcnt lgkmcnt(0)
""")
    stamp(a, 7)
    if P.diag: a("s_memrealtime s[98:99]")
    a(f"""
s_nop 0
v_mfma_f32_32x32x16_bf16 {r(S[0],16)}, {r(K16[0],4)}, {r(Q16[0],4)}, {r(NEGM,16)}
v_mfma_f32_32x32x16_bf16 {r(S[0]+16,16)}, {r(K16[0],4)}, {r(Q16[1],4)}, {r(NEGM+16,16)}
s_nop 9
v_mfma_f32_32x32x4_2b_bf16 {r(S[0],32)}, {r(K4,2)}, {r(Q4,2)}, {r(S[0],32)} cbsz:1 abid:0
s_mov_b32 s34, 0
s_cmp_lt_u32 s20, 4
s_nop 15
s_nop 1
s_cbranch_scc1 L_loop
s_setprio 1
""")
    pro = list(a.lines)
    a(".p2align 6")
    a("L_loop:")
    body = Asm()
    for j in range(4): step(body, j, P.sched)
    for e in check(body.lines + body.lines, "loop"): print(e)
    for e in check(pro + body.lines, "pro"): print(e)
    a.lines += body.lines
    a("""
s_add_u32 s34, s34, 1
s_bitcmp1_b32 s35, s34
s_cbranch_scc0 L_loop
s_cmp_lt_u32 s34, 15
s_cbranch_scc1 L_event
""")
    ep = Asm()
    stamp(ep, 'v6')
    def fragreg(n): return WPF + 4*n if n < 16 else (NEGM + 4*(n-16) if n < 24 else 168)
    for j in range(4):
        extra = None
        if j == 3: extra = {2 + 3*i: (lambda n=16+i: wo_load(ep, n, fragreg(n))) for i in range(8)}
        step(ep, j, P.sched, last=True, extra=extra)
    ep("s_nop 1")
    ep(f"v_smfmac_f32_32x32x32_bf16 {r(O[1],16)}, {r(V[1][1],4)}, {r(S[1]+24,8)}, v{IDX}")
    ep("s_setprio 0\ns_waitcnt vmcnt(8)")
    stamp(ep, 8)
    if P.diag: ep("s_memrealtime s[96:97]")
    ep(f"""
s_getreg_b32 s33, hwreg(HW_REG_XCC_ID, 0, 4)
s_nop 0
v_cmp_ne_u32 vcc, s33, v11
s_cmp_eq_u64 vcc, 0
s_cselect_b32 s25, {P.fast}, 0
s_lshl_b32 s26, s21, 3
s_add_u32 s34, s26, s22
s_mul_i32 s34, s34, 20480
s_add_u32 s26, s26, s20
s_mul_i32 s26, s26, 20480
s_add_u32 s26, s26, {WS_O}
s_mul_i32 s33, s47, 10240
s_add_u32 s34, s34, s33
s_add_u32 s34, s34, {WS_O}
s_lshl_b32 s35, s46, 10
s_add_u32 s35, s35, s34
s_lshl_b32 s28, s46, 8
s_add_u32 s28, s28, s34
s_add_u32 s28, s28, 4096
v_and_b32 v12, 15, v2
v_bfe_u32 v13, v2, 4, 1
v_mul_u32_u24 v13, 5120, v13
v_lshl_add_u32 v14, v12, 4, v13
v_lshl_add_u32 v15, v4, 8, v14
""")
    for t in range(2):
        ep(f"v_rcp_f32 v{12+t}, v{O[t]+12}")
    ep("s_nop 0")
    for t in range(2):
        ep(f"v_mul_f32 v{12+t}, v{12+t}, v10")
    for t in range(2):
        for i in range(12):
            ep(f"v_mul_f32 v{O[t]+i}, v{O[t]+i}, v{12+t}")
        for i in range(4):
            ep(f"v_cvt_pk_bf16_f32 v{172+4*t+i}, v{O[t]+2*i}, v{O[t]+2*i+1}")
        for i in range(2):
            ep(f"v_cvt_pk_bf16_f32 v{180+2*t+i}, v{O[t]+8+2*i}, v{O[t]+9+2*i}")
    ep("v_mov_b32 v184, v14\nv_mov_b32 v185, v15\ns_mov_b32 s53, s35\ns_mov_b32 s54, s28")
    ep("s_cmp_eq_u32 s25, 0\ns_cbranch_scc1 L_st1")
    for sc, tail in ((P.o_sc, "s_branch L_st2\nL_st1:"), ("sc1", "L_st2:")):
        for t in range(2):
            ep(f"buffer_store_dwordx4 {r(172+4*t,4)}, v15, s[8:11], s35 offen offset:{512*t} {sc}")
        ep(f"s_mov_b32 exec_hi, 0\nbuffer_store_dwordx4 v[180:183], v14, s[8:11], s28 offen {sc}\n{tail}")
    ep(f"""
s_mov_b64 exec, -1
s_mul_i32 s28, s20, 20480
v_add_u32 v5, s28, v1
""")
    BFR = 88; WL2 = 52
    for nt in range(4):
        ep(f"s_add_u32 s33, s22, {nt}\ns_and_b32 s33, s33, 3\ns_mul_i32 s33, s33, 5120\nv_add_u32 v{6+nt}, s33, v5\ns_add_u32 s{40+2*nt}, s26, s33\ns_add_u32 s{41+2*nt}, s{40+2*nt}, 1024")
    srd(ep, 12, 58, 2048*1280)
    ep(f"""
s_lshl_b32 s30, s21, 9
s_add_u32 s30, s30, {WS_FLAG + 256}
s_lshl_b32 s31, s22, 5
s_add_u32 s31, s31, s30
s_lshl_b32 s33, s20, 2
s_add_u32 s31, s31, s33
s_lshl_b32 s33, s20, 5
s_add_u32 s30, s30, s33
v_lshlrev_b32 v15, 2, v2
v_mov_b32 v14, 1
s_mov_b64 exec, 1
""")
    stamp(ep, 'e1')
    ep(f"""
s_cmp_eq_u32 s25, 0
s_waitcnt vmcnt(0)
s_cbranch_scc1 L_fl1
buffer_store_dword v14, v15, s[8:11], s31 offen
s_branch L_fl2
L_fl1:
buffer_store_dword v14, v15, s[8:11], s31 offen sc1
s_waitcnt vmcnt(0)
L_fl2:
""")
    if P.p1first: ep("s_barrier")
    stamp(ep, 9)
    ep(f"""
s_mov_b32 s33, 0
s_mov_b64 exec, 0xff
L_poll2:
buffer_load_dword v14, v15, s[8:11], s30 offen sc1
s_add_u32 s33, s33, 1
s_waitcnt vmcnt(0)
v_cmp_ne_u32 vcc, 1, v14
s_cmp_eq_u64 vcc, 0
s_cbranch_scc1 L_p2ok
s_cmp_ge_u32 s33, {P.spin_max}
s_cbranch_scc1 L_p2ok
s_sleep {P.probe_sleep}
s_branch L_poll2
L_p2ok:
s_mov_b64 exec, -1
""")
    def frag(s_, mt):
        return fragreg(5*s_ + mt)
    def breg(nt, s_): return (52 + 20*nt if nt < 3 else 144) + 4*s_
    stamp(ep, 10)
    AC2 = [12, 32]
    def mblock(sc):
        def bl(nt, s_):
            if s_ == 0: ep(f"buffer_load_dwordx4 {r(breg(nt,0),4)}, v1, s[8:11], s{40+2*nt} offen {sc}")
            else: ep(f"buffer_load_dwordx4 {r(breg(nt,s_),4)}, v1, s[8:11], s{41+2*nt} offen offset:{(s_-1)*1024} {sc}")
        LEAD = P.lead
        seq = [(nt, s_) for nt in range(4) for s_ in range(5)]
        for i in range(LEAD): bl(*seq[i])
        issued = LEAD
        stamp(ep, 'e3')
        for i, (nt, s_) in enumerate(seq):
            acc = AC2[nt % 2]
            if s_ == 0 and P.mprio: ep(f"s_setprio {3-nt}")
            if (nt, s_) == (1, 0) and not P.p1first: ep("s_barrier")
            ep(f"s_waitcnt vmcnt({issued - i - 1})")
            if i == 0: stamp(ep, 'e4')
            for mt in range(5):
                c = "0" if s_ == 0 else r(acc+4*mt,4)
                ep(f"v_mfma_f32_16x16x32_bf16 {r(acc+4*mt,4)}, {r(frag(s_,mt),4)}, {r(breg(nt,s_),4)}, {c}")
                if mt == 0 and issued < 20: bl(*seq[issued]); issued += 1
                if P.wbl2 and i == 19 - 0 and mt == 1: ep(f"s_cmp_lg_u32 s20, 0\ns_cbranch_scc1 L_nwb\nbuffer_wbl2 sc1\nL_nwb:")
                if nt > 0 and P.wspread and mt == 3:
                    pa = AC2[(nt-1) % 2]
                    ep(f"ds_write_b128 v{6+nt-1}, {r(pa+4*s_,4)} offset:{s_*1024}")
            if s_ == 2 and nt > 0 and not P.wspread:
                pa = AC2[(nt-1) % 2]
                for mt in range(5):
                    ep(f"ds_write_b128 v{6+nt-1}, {r(pa+4*mt,4)} offset:{mt*1024}")
    mblock('sc1')
    stamp(ep, 'e5')
    if P.restore:
        ep(f"""
s_cmp_eq_u32 s25, 0
s_cbranch_scc1 L_nrs
buffer_store_dwordx4 v[172:175], v185, s[8:11], s53 offen sc1
buffer_store_dwordx4 v[176:179], v185, s[8:11], s53 offen offset:512 sc1
s_mov_b32 exec_hi, 0
buffer_store_dwordx4 v[180:183], v184, s[8:11], s54 offen sc1
s_mov_b64 exec, -1
L_nrs:
""")
    ep("s_nop 4")
    for mt in range(5):
        ep(f"ds_write_b128 v9, {r(AC2[1]+4*mt,4)} offset:{mt*1024}")
    ep(f"""
v_and_b32 v6, 15, v2
v_lshrrev_b32 v7, 4, v2
v_mul_u32_u24 v6, 1280, v6
v_lshl_add_u32 v6, v7, 3, v6
s_mul_i32 s26, s21, {64*1280}
s_mul_i32 s27, s22, 160
s_add_u32 s26, s26, s27
s_mov_b32 s28, s20
s_waitcnt lgkmcnt(0)
s_barrier
""")
    stamp(ep, 'e6')
    ep("s_lshl_b32 s33, s20, 10\nv_add_u32 v7, s33, v1\nv_add_u32 v8, 0xa000, v7\nv_add_u32 v9, 0x14000, v7\nv_add_u32 v10, 0x1e000, v7")
    def rd(u):
        for p in range(8):
            ep(f"ds_read_b128 {r(64+32*u+4*p,4)}, v{7+p//2} offset:{(p%2)*20480 + u*8192}")
    def fin(u):
        b = 64 + 32*u
        ep(f"""
s_add_u32 s28, s20, {8*u}
s_mul_i32 s33, s28, 52
s_lshr_b32 s33, s33, 8
s_mul_i32 s34, s33, {16*1280 - 5*32}
s_lshl_b32 s35, s28, 5
s_add_u32 s34, s34, s35
s_add_u32 s34, s34, s26
""")
        for i in range(4):
            for p in range(0, 8, 2): ep(f"v_add_f32 v{b+4*p+i}, v{b+4*p+i}, v{b+4+4*p+i}")
        for i in range(4):
            ep(f"v_add_f32 v{b+i}, v{b+i}, v{b+8+i}")
            ep(f"v_add_f32 v{b+16+i}, v{b+16+i}, v{b+24+i}")
        for i in range(4): ep(f"v_add_f32 v{b+i}, v{b+i}, v{b+16+i}")
        ep(f"""
v_cvt_pk_bf16_f32 v{b+4}, v{b}, v{b+1}
v_cvt_pk_bf16_f32 v{b+5}, v{b+2}, v{b+3}
buffer_store_dwordx2 {r(b+4,2)}, v6, s[12:15], s34 offen {P.out_sc}
""")
    rd(0)
    ep("s_waitcnt lgkmcnt(7)")
    rd(1)
    ep("s_waitcnt lgkmcnt(8)")
    fin(0)
    ep("s_cmp_lt_u32 s20, 4\ns_cbranch_scc0 L_f2")
    ep("s_waitcnt lgkmcnt(0)")
    rd(2)
    fin(1)
    ep("s_waitcnt lgkmcnt(0)")
    fin(2)
    ep("s_branch L_f3\nL_f2:\ns_waitcnt lgkmcnt(0)")
    fin(1)
    ep("L_f3:")
    if P.diag:
        ex = {'all': "s_sub_u32 s90, s94, s100", 'pre': "s_sub_u32 s90, s98, s100", 'post': "s_sub_u32 s90, s94, s96", 'zero': "s_mov_b32 s90, 0"}[P.diag]
        ep(f"""
s_waitcnt vmcnt(0)
s_cmp_lg_u32 s20, 0
s_cbranch_scc1 L_end
s_memrealtime s[94:95]
s_waitcnt lgkmcnt(0)
{ex}
L_dg:
s_memrealtime s[92:93]
s_waitcnt lgkmcnt(0)
s_sub_u32 s91, s92, s94
s_cmp_lt_u32 s91, s90
s_cbranch_scc1 L_dg
""")
    if P.timing:
        ep("s_waitcnt vmcnt(0)")
        stamp(ep, 11)
        ep("s_memrealtime s[4:5]\ns_waitcnt lgkmcnt(0)")
        for i in range(NST): ep(f"v_mov_b32 v{40+i}, s{76+2*i}")
        ep(f"""
v_mov_b32 v52, s100
v_mov_b32 v53, s4
v_mov_b32 v54, 0
v_mov_b32 v55, 0
s_lshl_b32 s26, s2, 3
s_add_u32 s26, s26, s20
s_lshl_b32 s26, s26, 6
s_add_u32 s26, s26, {WS_TIME}
v_mov_b32 v9, 0
s_mov_b64 exec, 1
""")
        for i in range(4): ep(f"buffer_store_dwordx4 {r(40+4*i,4)}, v9, s[8:11], s26 offen offset:{16*i}")
    for e in check(body.lines + ["s_nop 3"] + ep.lines, "epi"): print(e)
    a.lines += ep.lines
    a("L_end:\ns_endpgm")
    x = Asm()
    x(f"""
L_event:
s_sub_u32 s33, s34, s32
s_cmp_eq_u32 s33, 0
s_cbranch_scc1 L_pf
s_cmp_eq_u32 s33, 1
s_cbranch_scc1 L_pf1
s_cmp_eq_u32 s33, 2
s_cbranch_scc1 L_pf2
s_cmp_eq_u32 s33, 3
s_cbranch_scc1 L_pf3
s_cmp_eq_u32 s34, {P.prio_switch}
s_cbranch_scc1 L_ev2
""")
    stamp(x, 'v0')
    x("s_barrier")
    stamp(x, 'v1')
    x("s_branch L_loop\nL_ev2:")
    stamp(x, 'v5')
    x("s_setprio 0\ns_branch L_loop\nL_pf:")
    stamp(x, 'v2')
    x(f"""
v_lshlrev_b32 v5, 2, v2
s_mov_b32 s33, 0
L_poll3:
buffer_load_dword v6, v5, s[72:75], 0 offen sc1
s_add_u32 s33, s33, 1
s_waitcnt vmcnt(0)
s_add_u32 s28, s22, 8
v_readlane_b32 s4, v6, 0
v_readlane_b32 s5, v6, 32
v_readlane_b32 s28, v6, s28
s_nop 3
s_min_u32 s4, s4, s5
s_lshl_b32 s28, s28, 2
s_min_u32 s4, s4, s28
s_cmp_ge_u32 s4, 128
s_cbranch_scc1 L_p3ok
s_cmp_ge_u32 s33, {P.spin_max}
s_cbranch_scc1 L_p3ok
s_sleep 8
s_branch L_poll3
L_p3ok:
""")
    stamp(x, 'v3')
    x(f"""
s_lshl_b32 s28, s21, 9
s_add_u32 s28, s28, {WS_FLAG}
v_and_b32 v5, 7, v2
v_lshlrev_b32 v5, 2, v5
buffer_load_dword v11, v5, s[8:11], s28 offen sc1
v_lshlrev_b32 v5, 2, v2
buffer_load_dword v6, v5, s[8:11], s28 offen offset:256 sc1
s_lshl_b32 s28, s23, 13
s_lshl_b32 s33, s21, 8
s_add_u32 s28, s28, s33
s_lshl_b32 s33, s47, 7
s_add_u32 s28, s28, s33
s_add_u32 s28, s28, {WS_GATE}
buffer_load_dword v10, v191, s[8:11], s28 offen sc1
s_lshl_b32 s33, s21, 3
s_add_u32 s33, s33, s22
s_mul_i32 s33, s33, 20480
s_mul_i32 s28, s20, 2560
s_add_u32 s33, s33, s28
s_add_u32 s33, s33, {WS_O}
buffer_load_dwordx4 {r(WPF,4)}, v1, s[8:11], s33 offen sc1
buffer_load_dwordx4 {r(WPF,4)}, v1, s[8:11], s33 offen offset:1024 sc1
buffer_load_dwordx4 {r(WPF,4)}, v1, s[8:11], s33 offen offset:1536 sc1
""")
    x("s_branch L_loop\nL_pf1:")
    for n in range(16, 24): wo_load(x, n, WPF + 4*(n-16))
    wo_load(x, 24, 168)
    x("s_branch L_loop\nL_pf2:")
    for n in range(8): wo_load(x, n, WPF + 4*n)
    x("s_branch L_loop\nL_pf3:")
    for n in range(8, 16): wo_load(x, n, WPF + 4*n)
    stamp(x, 'v4')
    x("s_branch L_loop")
    x(f"""
L_aslow:
s_setprio 1
s_barrier
s_branch L_slow
L_bwave:
""")
    for i, l in enumerate(R9):
        if i == 12: x('s_waitcnt lgkmcnt(6)')
        x(l)
    x(f"""
s_waitcnt vmcnt(0) lgkmcnt(0)
s_barrier
s_cmp_eq_u32 s20, 4
s_cbranch_scc1 L_rpl
s_sub_u32 s33, s20, 5
s_lshl_b32 s33, s33, 10
s_add_u32 s33, s33, {NKE*8192}
L_dma:
""")
    kvdma(x, 1)
    x(f"""
s_add_u32 s33, s33, 3072
s_cmp_lt_u32 s33, {RB}
s_cbranch_scc1 L_dma
L_rplb:
s_setprio 3
""")
    main = a
    a = x
    mm8(False, 63)
    a = main
    x(f"""
s_branch L_tJ
L_bw2:
s_cmp_eq_u32 s20, 4
s_cbranch_scc1 L_repack
s_waitcnt vmcnt(0)
L_bsync:
s_setprio {P.bprio2}
s_barrier
s_cmp_lg_u64 vcc, 0
s_cbranch_scc1 L_slow
L_nosync:
s_mov_b32 s35, {mb}
s_mov_b32 s32, {P.pf_b}
s_branch L_go
""")
    x(f"""
L_rpl:
s_cmp_eq_u32 s52, 1
s_cbranch_scc1 L_rpa
v_mov_b32 v5, 1
v_mov_b32 v6, 0
s_lshl_b32 s33, s23, 7
s_mov_b64 exec, 1
buffer_atomic_add v5, v6, s[72:75], s33 offen
s_mov_b64 exec, -1
L_rpa:
s_cmp_lt_u32 s2, 128
s_cselect_b32 s4, s44, s54
s_cselect_b32 s5, s45, s55
s_mov_b32 s6, 819200
s_mov_b32 s7, 0x00020000
s_bfe_u32 s33, s2, 0x20005
s_mul_i32 s33, s33, 160
s_and_b32 s34, s2, 3
s_mul_i32 s34, s34, 40
s_add_u32 s33, s33, s34
s_mul_i32 s33, s33, 1280
s_bfe_u32 s34, s2, 0x30002
s_mul_i32 s34, s34, 160
s_add_u32 s33, s33, s34
""")
    for i in range(7):
        x(f"v_add_u32 v5, {64*i}, v2")
        x(f"v_mul_u32_u24 v6, 52429, v5")
        x(f"v_lshrrev_b32 v6, 19, v6")
        x(f"v_mul_u32_u24 v6, 1120, v6")
        x(f"v_lshl_add_u32 v6, v5, 4, v6")
        x(f"s_mov_b32 m0, {RB + i*1024}")
        x("s_nop 0")
        x(f"buffer_load_dwordx4 v6, s[4:7], s33 offen lds")
    x(f"""
s_branch L_rplb
L_repack:
v_and_b32 v6, 15, v2
v_lshrrev_b32 v7, 4, v2
v_and_b32 v8, 3, v6
v_lshlrev_b32 v8, 3, v8
v_lshrrev_b32 v9, 2, v6
v_mul_u32_u24 v9, 160, v9
s_mov_b32 s33, {RB}
v_add3_u32 v8, v8, v9, s33
v_lshrrev_b32 v9, 1, v7
v_mul_u32_u24 v9, 3200, v9
v_and_b32 v11, 1, v7
v_mul_u32_u24 v11, 640, v11
v_add3_u32 v9, v9, v11, v8
v_lshl_add_u32 v11, v7, 5, v8
v_lshlrev_b32 v13, 4, v6
v_lshl_add_u32 v13, v7, 10, v13
s_waitcnt vmcnt(0) lgkmcnt(0)
""")
    RF = 224
    for mt in range(5):
        x(f"ds_read_b64_tr_b16 {r(RF+4*mt,2)}, v9 offset:{mt*32}")
        x(f"ds_read_b64_tr_b16 {r(RF+2+4*mt,2)}, v9 offset:{mt*32+1280}")
    x(f"""
ds_read_b64_tr_b16 {r(RF+20,2)}, v11 offset:2560
ds_read_b64_tr_b16 {r(RF+22,2)}, v11 offset:5760
ds_read_b64_tr_b16 {r(RF+24,2)}, v8 offset:{2560+128}
ds_read_b64_tr_b16 {r(RF+26,2)}, v8 offset:{5760+128}
s_bfe_u32 s4, s2, 0x30002
s_lshl_b32 s5, s4, 3
s_lshr_b32 s6, s2, 5
s_add_u32 s5, s5, s6
s_mul_i32 s5, s5, 25600
s_add_u32 s5, s5, {WS_WF}
s_and_b32 s6, s2, 3
s_mul_i32 s7, s6, 5120
s_add_u32 s7, s7, s5
s_lshl_b32 s6, s6, 8
s_add_u32 s5, s5, s6
s_add_u32 s5, s5, 20480
s_add_u32 s6, s7, 4096
s_waitcnt lgkmcnt(0)
""")
    for mt in range(4):
        x(f"buffer_store_dwordx4 {r(RF+4*mt,4)}, v1, s[8:11], s7 offen offset:{mt*1024} sc1")
    x(f"""
buffer_store_dwordx4 {r(RF+16,4)}, v1, s[8:11], s6 offen sc1
buffer_store_dwordx4 {r(RF+20,4)}, v13, s[8:11], s5 offen sc1
s_add_u32 s5, s5, 4096
s_mov_b64 exec, 0xffff
buffer_store_dwordx4 {r(RF+24,4)}, v13, s[8:11], s5 offen sc1
s_mov_b64 exec, -1
s_mov_b32 s33, {RB}
L_dma4:
""")
    kvdma(x, 1)
    x(f"""
s_add_u32 s33, s33, 1024
s_cmp_lt_u32 s33, {KVIMG}
s_cbranch_scc1 L_dma4
""")
    x(f"""
s_lshl_b32 s4, s4, 2
s_add_u32 s4, s4, 32
v_mov_b32 v5, 1
v_mov_b32 v6, 0
s_waitcnt vmcnt(0)
s_mov_b64 exec, 1
buffer_atomic_add v5, v6, s[72:75], s4 offen
s_mov_b64 exec, -1
s_branch L_bsync
""")
    for e in check(x.lines, "x"): print(e)
    a.lines += x.lines
    sl_ = Asm()
    sl_(f"""
L_slow:
v_mov_b32 v48, 0xff800000
v_mov_b32 v49, 0xff800000
v_mov_b32 v52, v{AK}
s_mov_b32 s34, 0
L_sl_loop:
ds_read_b128 {r(K4,4)}, v52 offset:4096
""")
    for j in range(4):
        sl_(f"ds_read_b128 {r(K16[0],4)}, v52 offset:{j*1024}")
        sl_("s_waitcnt lgkmcnt(0)")
        sl_(f"v_mfma_f32_32x32x4_2b_bf16 v[16:47], {r(K4+(2 if j>=2 else 0),2)}, {r(Q4,2)}, 0 cbsz:1 abid:{j&1}")
        sl_("s_nop 15\ns_nop 1")
        sl_(f"v_mfma_f32_32x32x16_bf16 v[16:31], {r(K16[0],4)}, {r(Q16[0],4)}, v[16:31]")
        sl_(f"v_mfma_f32_32x32x16_bf16 v[32:47], {r(K16[0],4)}, {r(Q16[1],4)}, v[32:47]")
        sl_("s_nop 11")
        for t in range(2):
            for i in range(0, 16, 2):
                sl_(f"v_max3_f32 v{48+t}, v{16+16*t+i}, v{17+16*t+i}, v{48+t}")
    sl_(f"""
v_add_u32 v52, s29, v52
s_add_u32 s34, s34, 1
s_cmp_lt_u32 s34, 16
s_cbranch_scc1 L_sl_loop
v_mov_b32 v50, v48
v_mov_b32 v51, v49
s_nop 1
v_permlane32_swap_b32 v48, v50
v_permlane32_swap_b32 v49, v51
s_nop 1
v_max_f32 v48, v48, v50
v_max_f32 v49, v49, v51
v_sub_f32 v48, 0, v48
v_sub_f32 v49, 0, v49
""")
    sl_(firstreads)
    sl_("s_branch L_nosync")
    for e in check(sl_.lines + sl_.lines, "slow"): print(e)
    a.lines += sl_.lines
    a("L_codeend:")
    return a

DOC = '''; ---------------------------------------------------------------------------------------------
; ---------------------------------------------------------------------------------------------
'''

def build():
    k = gen()
    name = NAME + "_kernel"
    head = open("cdna_kernels/%s.s.ref" % NAME).read().split("; Override launch")[0]
    out = head + "; @launch grid=(256,1,1) block=(512,1,1) lds=163840\n"
    out += '.amdgcn_target "amdgcn-amd-amdhsa--gfx950"\n' + DOC + '.text\n' + k.text()
    out += f""".section .rodata,"a"
.p2align 6
.amdhsa_kernel {name}
  .amdhsa_next_free_vgpr 256
  .amdhsa_next_free_sgpr 102
  .amdhsa_accum_offset 256
  .amdhsa_group_segment_fixed_size 0
  .amdhsa_kernarg_size 112
  .amdhsa_user_sgpr_count 2
  .amdhsa_user_sgpr_kernarg_segment_ptr 1
  .amdhsa_system_sgpr_workgroup_id_x 1
.end_amdhsa_kernel
"""
    return out

def emit(fn, **kw):
    saved = {k: getattr(P, k) for k in kw}
    for k, v in kw.items(): setattr(P, k, v)
    open(fn, "w").write(build())
    for k, v in saved.items(): setattr(P, k, v)

if __name__ == "__main__":
    B = "bench/"
    emit(B+"v43.s")
    emit("cdna_kernels/" + NAME + ".s")
```

```python
import sys, struct, math
from asmlib import Asm, check

NAME = "gated_mix__grouped_kv_mqa__grouped_kv_mqa__prompt"
KVIMG = 163840
WS_KMAX = 0x50000
WS_GATE = 0x51000
WS_FLAG = 0x58000
WS_GO = 0x5c000
WS_O = 0x60000
WS_WF = WS_O + 32*8*20480
WS_SIZE = WS_WF + 64*25600
WS_TIME = 0x780000
f2u = lambda x: struct.unpack("<I", struct.pack("<f", x))[0]
CSCALE = f2u(math.log2(math.e)/math.sqrt(20.0))
LOG2E = f2u(math.log2(math.e))

def r(b, n): return f"v[{b}:{b+n-1}]"

XB = 0
SB = 81920
SLOT = [SB, SB+20480, SB+40960, SB+61440]
WKB = SLOT[2]
GB = WKB + 25600
YB = SLOT[2]
RB = 153600
KMX = SLOT[2] + 32768
S = [16, 48]
O = [80, 96]
NEGM = 112
Q16 = [144, 148]
Q4 = 152
IDX = 154
K16 = [156, 160]
K4 = 164
V = [[172, 176], [180, 184]]
AK, AV = 188, 189
WPF = 192

class P:
    sched = [2,'Sp','W',3,'T',8,'S0',2,'LV',3,'S1',2,'LK',2,'M0',4,'S2',3,'M1',3]
    prio_switch = 12
    sync_iter = 3
    sync2 = 7
    pf_a = 6
    pf_b = 5
    timing = False
    spin_max = 60000
    lead = 4
    probe_sleep = 2
    probe = [(0,4),(2,4),(0,0),(0,1),(0,2),(0,3)]
    fast = 1
    cpm = 1
    cplim = 64
    o2 = True
    pi = 5
    mo = [0,4,1,5,2,6,3,7]
    tp = [3,3,3,3,3,1,0,0]
    xr = True
    ocopy = True
    diag = None
    trper = 2
    wpre = 0
    restore = False
    codepf = True
    o_sc = ''
    wbl2 = False
    p1first = True
    mprio = True
    wspread = True
    pretouch = 1
    fast_sc = ''
    out_sc = ''
    rot = 1
    pc = 7
    kve = [3, 2]
    fc = 1
    early1 = True
    chk = 1
    s1u = 0
    bprio = 1
    bprio2 = 3
    lastfirst = True
    chkcnt = 0
    atom_first = False
    psleep = 2

def step(a, j, sched, last=False, extra=None):
    X = S[j % 2]; Y = S[(j+1) % 2]
    Vc = V[j % 2]; Vp = V[(j+1) % 2]
    jn = (j + 1) % 4
    k4 = K4 + (2 if jn >= 2 else 0)
    abid = jn & 1
    def e(i): a(f"v_exp_f32 v{X+i}, v{X+i}")
    ops = {
      'W': lambda: a("s_waitcnt lgkmcnt(0)"),
      'Sp': lambda: a(f"v_smfmac_f32_32x32x32_bf16 {r(O[1],16)}, {r(Vp[1],4)}, {r(Y+24,8)}, v{IDX}"),
      'T': lambda: a(f"v_mfma_f32_32x32x4_2b_bf16 {r(Y,32)}, {r(k4,2)}, {r(Q4,2)}, {r(NEGM,32)} cbsz:1 abid:{abid}"),
      'S0': lambda: a(f"v_smfmac_f32_32x32x32_bf16 {r(O[0],16)}, {r(Vc[0],4)}, {r(X,8)}, v{IDX}"),
      'S1': lambda: a(f"v_smfmac_f32_32x32x32_bf16 {r(O[0],16)}, {r(Vc[1],4)}, {r(X+8,8)}, v{IDX}"),
      'S2': lambda: a(f"v_smfmac_f32_32x32x32_bf16 {r(O[1],16)}, {r(Vc[0],4)}, {r(X+16,8)}, v{IDX}"),
      'M0': lambda: a(f"v_mfma_f32_32x32x16_bf16 {r(Y,16)}, {r(K16[(j+1)%2],4)}, {r(Q16[0],4)}, {r(Y,16)}"),
      'M1': lambda: a(f"v_mfma_f32_32x32x16_bf16 {r(Y+16,16)}, {r(K16[(j+1)%2],4)}, {r(Q16[1],4)}, {r(Y+16,16)}"),
    }
    def LV():
        voff = 5120 + (j+1)*1280 if j < 3 else 10240 + 5120
        a("s_mov_b64 exec, s[30:31]")
        a(f"ds_read_b128 {r(Vp[0],4)}, v{AV} offset:{voff}")
        a(f"ds_read_b128 {r(Vp[1],4)}, v{AV} offset:{voff+640}")
        a("s_mov_b64 exec, -1")
    def LK():
        koff = (j+2)*1024 if j < 2 else 10240 + (j-2)*1024
        a(f"ds_read_b128 {r(K16[j%2],4)}, v{AK} offset:{koff}")
        if j == 2:
            a(f"ds_read_b128 {r(K4,4)}, v{AK} offset:{10240+4096}")
        if j == 3:
            a(f"v_add_u32 v{AK}, s29, v{AK}")
            a(f"v_add_u32 v{AV}, s29, v{AV}")
    ops['LV'] = LV; ops['LK'] = LK
    ei = 0
    for tok in sched:
        if isinstance(tok, int):
            for _ in range(tok):
                e(ei); ei += 1
                if extra and ei in extra: extra[ei]()
        elif last and ((j == 3 and tok in ('T','M0','M1','LV','LK')) or (j == 2 and tok == 'LK')): pass
        else: ops[tok]()
    assert ei == 32

NST = 12
MODES = {
 'all': [0,2,'c0','c7','c9',6,5,7,8,9,10,11],
 'post': [0,7,8,'e1',9,10,'e3','e4','e5','e6',11,'zz'],
 'pre': [0,2,'x0','c0','c1','c2','c4','c6','c7','c9',6,7],
 'it': [0,'c1','c2','c3','c4','c5','c6','w7','c7','c8','c9',7],
 'i8': [0,'c7','c8','y0','y1','y2','y3','y4','c9',6,5,7],
 'ev': [0,7,'v0','v1','v2','v3','v4','v5','v6',8,9,11],
 'bq': [0,6,'b0','b1','q1','q4','q7','b2','b3','b4',7,8],
}
def stamp(a, i):
    if P.timing and i in MODES[P.timing]:
        k = MODES[P.timing].index(i)
        a(f"s_memtime s[{76+2*k}:{77+2*k}]")

def srd(a, d, lo, size):
    a(f"s_mov_b32 s{d}, s{lo}\ns_mov_b32 s{d+1}, s{lo+1}\ns_mov_b32 s{d+2}, {size}\ns_mov_b32 s{d+3}, 0x00020000")

def wo_load(a, n, dst):
    if n % 4 == 0: a(f"s_add_u32 s33, s27, {(n//4)*4096}")
    a(f"buffer_load_dwordx4 {r(dst,4)}, v1, s[8:11], s33 offen offset:{(n%4)*1024} sc1")

def kvdma(a, voff):
    a(f"""
s_mov_b32 m0, s33
s_add_u32 s34, s33, s3
s_cmp_ge_u32 s34, {KVIMG}
s_cselect_b32 s28, {KVIMG}, 0
s_sub_u32 s34, s34, s28
s_add_u32 s34, s34, s26
buffer_load_dwordx4 v{voff}, s[8:11], s34 offen sc1 lds
""")

def gen():
    a = Asm()
    name = NAME + "_kernel"
    a(f""".globl {name}
.p2align 8
.type {name},@function
{name}:
s_cmp_ge_u32 s2, 256
s_cbranch_scc1 L_end
s_load_dwordx16 s[36:51], s[0:1], 0
s_load_dwordx8 s[52:59], s[0:1], 64
s_load_dwordx4 s[60:63], s[0:1], 96
""")
    if P.timing or P.diag: a("s_memrealtime s[100:101]")
    stamp(a, 0)
    CODEPF = ""
    if P.cpm == 1:
        a(f"""
s_getpc_b64 s[6:7]
L_pc:
s_bfe_u32 s33, s2, 0x20003
s_lshl_b32 s33, s33, 13
v_lshl_add_u32 v246, v0, 4, s33
v_min_u32 v246, L_codeend-L_pc-16, v246
v_mov_b32 v247, s7
v_add_co_u32 v246, vcc, s6, v246
s_cmp_lt_u32 s2, {P.cplim}
s_cbranch_scc0 L_ncp
v_addc_co_u32 v247, vcc, 0, v247, vcc
global_load_dwordx4 v[248:251], v[246:247], off
L_ncp:
""")
    a(f"""
v_lshrrev_b32 v1, 6, v0
v_and_b32 v2, 63, v0
s_and_b32 s21, s2, 7
v_readfirstlane_b32 s20, v1
s_lshr_b32 s25, s2, 6
s_lshl_b32 s22, s25, 3
s_add_u32 s21, s21, s22
s_bfe_u32 s22, s2, 0x30003
s_lshr_b32 s23, s22, 2
s_and_b32 s24, s22, 3
{'s_mov_b32 s25, s22' if P.xr else 's_add_u32 s25, s25, s22'}
s_mul_i32 s26, s25, 52
s_lshr_b32 s26, s26, 8
s_mul_i32 s26, s26, 5
s_sub_u32 s25, s25, s26
v_lshlrev_b32 v1, 4, v2
s_lshl_b32 s26, s20, 2
v_lshrrev_b32 v11, 4, v2
v_add_u32 v11, s26, v11
v_xor_b32 v12, v11, v2
v_and_b32 v12, 15, v12
v_mul_u32_u24 v11, 1280, v11
v_lshl_add_u32 v10, v12, 4, v11
s_lshl_b32 s26, s20, 10
s_mul_i32 s5, s25, 5120
s_lshl_b32 s3, s25, 8
s_add_u32 s33, s3, s26
s_sub_u32 s33, s33, 1024
v_add_u32 v14, s33, v1
v_subrev_u32 v15, 1280, v14
v_min_u32 v14, v14, v15
s_and_b32 s32, s24, 1
s_mul_i32 s27, s21, {64*1280}
s_mul_i32 s33, s32, {32*1280}
s_add_u32 s27, s27, s33
s_lshl_b32 s29, s32, 13
s_add_u32 s29, s29, s26
s_mov_b32 s14, {2048*1280}
s_mov_b32 s15, 0x00020000
s_mov_b32 s66, 25600
s_mov_b32 s67, 0x00020000
s_mov_b32 s18, 819200
s_mov_b32 s19, 0x00020000
s_mov_b32 s70, 1280
s_mov_b32 s71, 0x00020000
v_and_b32 v3, 31, v2
v_lshrrev_b32 v4, 5, v2
{CODEPF}
s_waitcnt lgkmcnt(0)
s_mov_b32 s12, s36
s_mov_b32 s13, s37
""")
    def xload(i):
        a(f"""
s_add_u32 m0, s29, {i*16384}
s_add_u32 s33, s3, s27
buffer_load_dwordx4 v10, s[12:15], s33 offen lds
s_add_u32 s3, s3, 256
s_cmp_eq_u32 s3, 1280
s_cselect_b32 s3, 0, s3
""")
    def wkload():
        a(f"""
s_add_u32 m0, s31, {WKB}
s_add_u32 s33, s31, s5
s_cmp_ge_u32 s33, 25600
s_cselect_b32 s30, 25600, 0
s_sub_u32 s33, s33, s30
buffer_load_dwordx4 v1, s[64:67], s33 offen lds
""")
    def wk(i):
        a(f"s_add_u32 s31, s26, {i*8192}")
        wkload()
    def wq_set(a, c):
        a(f"""
s_xor_b32 s34, s{56 if c < 8 else 57}, {c}
s_add_u32 s34, s34, s53
s_cmp_ge_u32 s34, 10
s_cselect_b32 s33, 10, 0
s_sub_u32 s34, s34, s33
s_mul_i32 s34, s34, {64*1280}
s_add_u32 s34, s34, s35
""")
    def wq5(a, ldsbase, c):
        wq_set(a, c)
        for i in range(5):
            a(f"s_add_u32 m0, s28, {ldsbase + i*960}")
            a("s_nop 0")
            a(f"buffer_load_dwordx4 v5, s[16:19], s34 offen offset:{64*i} lds")
    xload(0)
    a("""
s_cmp_eq_u32 s23, 0
s_cselect_b32 s16, s38, s48
s_cselect_b32 s17, s39, s49
s_cselect_b32 s40, s40, s50
s_cselect_b32 s41, s41, s51
s_cselect_b32 s42, s42, s52
s_cselect_b32 s43, s43, s53
s_cmp_lt_u32 s24, 2
s_cselect_b32 s64, s40, s42
s_cselect_b32 s65, s41, s43
s_mov_b32 s68, s56
s_mov_b32 s69, s57
""")
    wk(0)
    a(f"""
s_cmp_ge_u32 s20, 3
s_cbranch_scc1 L_noopt
s_cmp_eq_u32 s20, 0
s_cbranch_scc1 L_opt0
s_add_u32 m0, s26, {GB-1024}
s_nop 0
buffer_load_dwordx4 v14, s[68:71], 0 offen lds
s_branch L_noopt
L_opt0:
s_movk_i32 s31, {24*1024}
""")
    wkload()
    a("L_noopt:")
    xload(1); wk(1); xload(2)
    AF = [156, 228]; YF = [196, 212]; XK = [48, 80, 112]; XA = 144; ACC = [16, 32]; TA = 192; TY = 244
    def xfrag(c, k): return (XK[c >> 1] + 16*(c & 1) if c < 6 else (48, 64, 112, 128)[c-6]) + 4*k
    CSL = [SLOT[c % 4] for c in range(10)]
    KX = 200; KW = 204; KG = 205; KI = 206; KGp = 207; KACC, GACC = 208, 212; FB = [112, 216]
    srd(a, 8, 62, 0x1000000 if P.timing else WS_SIZE)
    srd(a, 72, 60, 256)
    a(f"""
s_lshl_b32 s51, s23, 11
s_add_u32 s51, s51, {WS_GO}
s_cmp_lg_u32 s20, 4
s_cbranch_scc1 L_nsnap
buffer_load_dword v252, v1, s[8:11], s51 offen sc1
buffer_load_dword v253, v1, s[8:11], s51 offen offset:1024 sc1
L_nsnap:
""")
    a(f"""
s_and_b32 s46, s20, 3
s_lshr_b32 s47, s20, 2
{'s_xor_b32 s47, s47, s32' if P.ocopy else ''}
""")
    def voffs(a, blk_rows, prrow, prcol):
        off = lambda p: prrow(p)*1280 + prcol(p)
        a(f"""
v_lshrrev_b32 v12, 4, v2
v_mul_u32_u24 v12, {blk_rows*1280}, v12
v_bfe_u32 v13, v2, 2, 2
v_mul_u32_u24 v13, 1280, v13
v_add_u32 v12, v12, v13
v_add_u32 v13, 1, v2
v_and_b32 v14, 1, v13
v_bfe_u32 v13, v13, 1, 1
v_mul_u32_u24 v14, {off(1)}, v14
v_mul_u32_u24 v13, {off(2)}, v13
v_add3_u32 v13, v13, v14, 64
v_add_u32 v9, v12, v13
""")
        for i in range(4):
            a(f"""
v_subrev_u32 v13, {i}, v2
v_bfe_u32 v14, v13, 1, 1
v_and_b32 v13, 3, v13
v_xor_b32 v13, v13, v14
v_lshl_add_u32 v13, v13, 4, v12
v_add_u32 v{5+i}, {off(i)}, v13
""")
    def traddr(a, dst, base_v, prv):
        a(f"""
v_bfe_u32 v12, v2, 2, 2
v_lshl_add_u32 v{base_v}, v12, 6, v{base_v}
v_and_b32 v12, 1, v2
v_lshlrev_b32 v12, 4, v12
v_bfe_u32 v14, v2, 1, 1
v_lshl_add_u32 v12, v14, 3, v12
v_bfe_u32 v14, v2, 4, 1
v_mad_u32_u24 v12, v14, 40, v12
v_lshrrev_b32 v15, 4, v12
v_and_b32 v12, 8, v12
v_cmp_eq_u32 vcc, 4, v15
v_lshrrev_b32 v14, 1, v15
v_xor_b32 v15, v14, v15
v_min_u32 v15, 3, v15
v_add_u32 v12, v{base_v}, v12
v_and_b32 v14, 1, v2
v_cmp_eq_u32 s[48:49], 1, v14
v_lshl_add_u32 v{base_v}, v14, 3, v{base_v}
""")
        for rho in range(2):
            prv(rho)
            a(f"""
v_add_u32 v14, v15, v13
v_and_b32 v14, 3, v14
v_lshl_add_u32 v{dst+rho}, v14, 4, v12
v_cndmask_b32 v14, v13, 4, vcc
v_lshl_add_u32 v{dst+rho}, v14, 10, v{dst+rho}
v_add_u32 v14, 3, v13
v_and_b32 v14, 3, v14
v_lshl_add_u32 v{dst+2+rho}, v14, 4, v{base_v}
v_cndmask_b32 v14, v13, 4, s[48:49]
v_lshl_add_u32 v{dst+2+rho}, v14, 10, v{dst+2+rho}
""")
    def xaddr(a, dst):
        a(f"""
s_lshl_b32 s33, s47, 13
v_and_b32 v14, 15, v3
v_lshlrev_b32 v15, 8, v3
v_add_u32 v15, s33, v15
v_xor_b32 v11, v4, v14
v_lshl_add_u32 v{dst}, v11, 4, v15
""")
        for s in range(1, 8): a(f"v_xor_b32 v{dst+s}, {s<<5}, v{dst}")
    def setup_att(a):
        a(f"""
v_mov_b32 v{AK}, v1
v_mov_b32 v{IDX}, 0xdddddddd
v_mul_u32_u24 v{AV}, 320, v4
v_lshl_add_u32 v{AV}, v3, 4, v{AV}
v_and_b32 v11, 27, v3
v_cmp_eq_u32 vcc, 24, v11
v_mov_b32 v13, 0x3f803f80
v_lshlrev_b32 v191, 2, v3
v_cndmask_b32 v13, 0, v13, vcc
""")
        for b in (V[0][0], V[0][1], V[1][0], V[1][1]):
            for i in range(4): a(f"v_mov_b32 v{b+i}, v13")
    a("""
v_lshrrev_b32 v12, 2, v2
v_mul_u32_u24 v12, 1280, v12
v_and_b32 v13, 3, v2
v_lshl_add_u32 v5, v13, 4, v12
""")
    a(f"""
s_mul_i32 s33, s46, {16*1280}
s_mul_i32 s34, s24, 320
s_add_u32 s35, s33, s34
s_lshl_b32 s53, s25, 1
s_lshr_b32 s56, s2, 6
{'' if P.xr else 's_mov_b32 s56, 0'}
s_and_b32 s57, s56, 1
s_mul_i32 s28, s46, 5120
""")
    xaddr(a, XA)
    a(f"s_lshl_b32 s33, s46, 5\ns_lshl_b32 s30, s57, 7\ns_or_b32 s33, s33, s30")
    for s in range(8): a(f"v_xor_b32 v{XA+s}, s33, v{XA+s}")
    a(f"""
v_lshlrev_b32 v11, 9, v4
v_bfe_u32 v12, v2, 2, 2
v_lshl_add_u32 v11, v12, 6, v11
v_add_u32 v11, {SB}, v11
v_and_b32 v13, 1, v2
v_lshlrev_b32 v12, 4, v13
v_bfe_u32 v14, v2, 1, 1
v_lshl_add_u32 v12, v14, 3, v12
v_bfe_u32 v14, v2, 4, 1
v_mad_u32_u24 v12, v14, 40, v12
s_mul_i32 s33, s46, 80
v_add_u32 v12, s33, v12
v_lshrrev_b32 v15, 6, v12
v_and_b32 v12, 63, v12
v_lshl_add_u32 v12, v15, 10, v12
v_add_u32 v12, v11, v12
v_xor_b32 v14, v13, v14
v_lshl_add_u32 v11, v14, 18, v11
v_bfe_u32 v13, v2, 1, 1
v_mul_u32_u24 v13, 40, v13
v_add3_u32 v13, v13, 32, s33
v_lshrrev_b32 v15, 6, v13
v_and_b32 v13, 63, v13
v_lshl_add_u32 v13, v15, 10, v13
v_add_u32 v153, v11, v13
""")
    for k in range(4):
        a(f"s_xor_b32 s33, s46, {k}\ns_mul_i32 s33, s33, 5120\nv_add_u32 v{TA+k}, s33, v12")
    a(f"""
v_and_b32 v{KI}, 15, v2
v_lshrrev_b32 v{KGp}, 4, v2
s_lshl_b32 s32, s32, 1
s_and_b32 s33, s20, 1
s_add_u32 s32, s32, s33
s_lshl_b32 s33, s32, 12
v_lshlrev_b32 v11, 8, v{KI}
v_add_u32 v11, s33, v11
v_xor_b32 v12, v{KGp}, v{KI}
v_lshl_add_u32 v{KX}, v12, 4, v11
v_xor_b32 v{KX+1}, 64, v{KX}
v_xor_b32 v{KX+2}, 128, v{KX}
v_xor_b32 v{KX+3}, 192, v{KX}
v_lshrrev_b32 v11, 2, v{KI}
v_lshl_add_u32 v11, v{KGp}, 3, v11
v_mul_u32_u24 v11, 40, v11
v_and_b32 v12, 3, v{KI}
v_lshlrev_b32 v12, 3, v12
s_bitcmp1_b32 s20, 1
s_cbranch_scc0 L_kvc0
v_mov_b32 v12, 32
L_kvc0:
s_mov_b32 s33, {WKB}
v_add3_u32 v{KW}, v11, v12, s33
v_lshlrev_b32 v{KG}, 4, v{KGp}
v_add_u32 v{KG}, {GB}, v{KG}
s_lshl_b32 s32, s32, 4
s_lshl_b32 s33, s21, 6
s_add_u32 s32, s32, s33
""")
    for i in range(8): a(f"v_mov_b32 v{KACC+i}, 0")
    stamp(a, 'p0')
    a("s_barrier")
    wk(2); xload(3); xload(4)
    a(f"""
s_xor_b32 s29, s29, 8192
s_bitcmp1_b32 s24, 0
s_cselect_b32 s33, {(-32*1280) & 0xffffffff}, 0
s_cselect_b32 s30, 0, {32*1280}
s_add_u32 s27, s27, s33
s_add_u32 s27, s27, s30
""")
    for i in range(20): a(f"v_mov_b32 v{16+i}, 0")
    setup_att(a)
    a("s_barrier")
    for i in range(5): xload(i)
    a(f"""
s_lshr_b32 s30, s32, 7
s_mul_i32 s30, s30, 10240
s_mul_i32 s26, s23, {KVIMG}
s_add_u32 s30, s30, s26
s_lshr_b32 s3, s2, 6
s_lshl_b32 s3, s3, 2
s_add_u32 s3, s3, s24
s_mul_i32 s3, s3, 11
s_lshr_b32 s3, s3, 4
s_mul_i32 s3, s3, 10240
s_lshl_b32 s27, s22, 3
s_add_u32 s27, s27, s20
s_mul_i32 s27, s27, 25600
s_add_u32 s27, s27, {WS_WF}
s_movk_i32 s29, 10240
s_lshl_b32 s50, s21, 2
s_add_u32 s50, s50, s24
""")
    stamp(a, 1)
    a(f"s_waitcnt vmcnt({10 if P.wpre else 5})")
    a("s_barrier")
    stamp(a, 2)
    a("s_cmp_lt_u32 s20, 4\ns_cbranch_scc1 L_oload\ns_setprio 1")
    def kv_chain(kind):
        def rd(g):
            b = FB[g % 2]
            for u in range(2):
                ks = 2*g + u
                if ks == 16:
                    for s in range(4): a(f"v_add_u32 v{KX+s}, 0x10000, v{KX+s}")
                a(f"ds_read_b128 {r(b+4*u,4)}, v{KX+(ks&3)} offset:{((ks>>2)&3)*16384}")
                a(f"ds_read_b64_tr_b16 {r(b+8+4*u,2)}, v{KW} offset:{ks*1280}")
                a(f"ds_read_b64_tr_b16 {r(b+10+4*u,2)}, v{KW} offset:{ks*1280+160}")
                if kind == 'G': a(f"ds_read_b128 {r(b+16+4*u,4)}, v{KG} offset:{ks*64}")
        n = 8 if kind == 'G' else 6
        rd(0)
        for g in range(10):
            if g < 9:
                if kind == 'G': a(f"s_waitcnt lgkmcnt(7)")
                rd(g+1)
                a(f"s_waitcnt lgkmcnt({n})")
            else: a("s_waitcnt lgkmcnt(0)")
            b = FB[g % 2]
            for u in range(2):
                if kind == 'K':
                    a(f"v_mfma_f32_16x16x32_bf16 {r(KACC,4)}, {r(b+8+4*u,4)}, {r(b+4*u,4)}, {r(KACC,4)}")
                else:
                    a(f"v_mfma_f32_16x16x32_bf16 {r(KACC,4)}, {r(b+4*u,4)}, {r(b+8+4*u,4)}, {r(KACC,4)}")
                    if kind == 'G': a(f"v_mfma_f32_16x16x32_bf16 {r(GACC,4)}, {r(b+4*u,4)}, {r(b+16+4*u,4)}, {r(GACC,4)}")
    a("s_cmp_ge_u32 s24, 2\ns_cbranch_scc1 L_kvV")
    kv_chain('K')
    a(f"""
s_mov_b32 s33, {CSCALE}
s_waitcnt vmcnt(0)
s_nop 6
v_mul_f32 v208, s33, v208
v_mul_f32 v209, s33, v209
v_mul_f32 v210, s33, v210
v_mul_f32 v211, s33, v211
v_cvt_pk_bf16_f32 v240, v208, v209
v_cvt_pk_bf16_f32 v241, v210, v211
v_mul_f32 v242, v208, v208
v_fmac_f32 v242, v209, v209
v_fmac_f32 v242, v210, v210
v_fmac_f32 v242, v211, v211
s_bitcmp1_b32 s20, 1
s_cbranch_scc1 L_kvK4
s_bfe_u32 s31, s32, 0x20005
s_lshl_b32 s31, s31, 10
s_add_u32 s30, s30, s31
s_and_b32 s31, s32, 31
s_lshl_b32 s31, s31, 4
s_add_u32 s30, s30, s31
v_mov_b32 v248, v240
v_mov_b32 v249, v241
v_mov_b32 v250, v240
v_mov_b32 v251, v241
v_lshrrev_b32 v243, 1, v207
v_lshlrev_b32 v243, 9, v243
v_permlane16_swap_b32 v248, v250
v_permlane16_swap_b32 v249, v251
v_lshl_add_u32 v243, v206, 4, v243
s_mov_b32 exec_lo, 0xffff
s_mov_b32 exec_hi, 0xffff
buffer_store_dwordx4 v[248:251], v243, s[8:11], s30 offen sc1
s_mov_b64 exec, -1
v_mov_b32 v244, v242
s_nop 1
v_permlane16_swap_b32 v242, v244
v_add_f32 v242, v242, v244
v_mov_b32 v244, v242
s_nop 1
v_permlane32_swap_b32 v242, v244
v_add_f32 v242, v242, v244
s_mov_b32 s30, 0
s_branch L_kvmax
L_kvK4:
s_and_b32 s31, s32, 63
s_lshl_b32 s31, s31, 4
s_add_u32 s30, s30, s31
s_bfe_u32 s31, s32, 0x10006
s_lshl_b32 s31, s31, 3
s_add_u32 s30, s30, s31
s_add_u32 s30, s30, 4096
v_lshlrev_b32 v243, 4, v206
s_mov_b64 exec, 0xffff
buffer_store_dwordx2 v[240:241], v243, s[8:11], s30 offen sc1
s_mov_b64 exec, -1
s_movk_i32 s30, 512
L_kvmax:
s_nop 1
v_max_f32_dpp v242, v242, v242 row_ror:8 row_mask:0xf bank_mask:0xf
s_nop 1
v_max_f32_dpp v242, v242, v242 row_ror:4 row_mask:0xf bank_mask:0xf
s_nop 1
v_max_f32_dpp v242, v242, v242 row_ror:2 row_mask:0xf bank_mask:0xf
s_nop 1
v_max_f32_dpp v242, v242, v242 row_ror:1 row_mask:0xf bank_mask:0xf
s_lshl_b32 s31, s23, 10
s_add_u32 s31, s31, s30
s_lshr_b32 s30, s32, 4
s_lshl_b32 s30, s30, 2
s_add_u32 s31, s31, s30
s_add_u32 s31, s31, {WS_KMAX}
v_mov_b32 v243, 0
s_mov_b64 exec, 1
buffer_store_dword v242, v243, s[8:11], s31 offen sc1
s_branch L_kvend
L_kvV:
s_bitcmp1_b32 s20, 1
s_cbranch_scc1 L_kvG
""")
    kv_chain('V')
    a("s_branch L_kvV2\nL_kvG:")
    kv_chain('G')
    a(f"""
s_mov_b32 s33, {LOG2E}
s_cmp_eq_u32 s23, 0
s_cselect_b32 s31, 0x80000000, 0
s_xor_b32 s33, s33, s31
s_lshl_b32 s31, s23, 13
s_lshl_b32 s4, s32, 2
s_add_u32 s31, s31, s4
s_add_u32 s31, s31, {WS_GATE}
""")
    for i in range(4): a(f"v_mul_f32 v{212+i}, s33, v{212+i}")
    for i in range(4): a(f"v_exp_f32 v{212+i}, v{212+i}")
    for i in range(4): a(f"v_add_f32 v{212+i}, 1.0, v{212+i}")
    for i in range(4): a(f"v_rcp_f32 v{212+i}, v{212+i}")
    a(f"""
v_lshlrev_b32 v243, 4, v207
s_waitcnt vmcnt(0)
s_mov_b32 exec_lo, 0x00010001
s_mov_b32 exec_hi, 0x00010001
buffer_store_dwordx4 v[212:215], v243, s[8:11], s31 offen sc1
s_mov_b64 exec, -1
s_branch L_kvV3
L_kvV2:
s_waitcnt vmcnt(0)
L_kvV3:
s_bfe_u32 s31, s32, 0x30004
s_mul_i32 s31, s31, 640
s_add_u32 s30, s30, s31
s_add_u32 s30, s30, 5120
v_lshrrev_b32 v243, 1, v207
v_mul_u32_u24 v243, 320, v243
v_lshl_add_u32 v243, v206, 4, v243
s_nop 1
v_cvt_pk_bf16_f32 v248, v208, v209
v_cvt_pk_bf16_f32 v249, v210, v211
v_cvt_pk_bf16_f32 v250, v208, v209
v_cvt_pk_bf16_f32 v251, v210, v211
s_bitcmp1_b32 s20, 1
s_cselect_b32 s31, 256, 0
s_cselect_b32 s33, 15, 0xffff
v_permlane16_swap_b32 v248, v250
v_permlane16_swap_b32 v249, v251
s_add_u32 s30, s30, s31
s_mov_b32 exec_lo, s33
s_mov_b32 exec_hi, s33
buffer_store_dwordx4 v[248:251], v243, s[8:11], s30 offen sc1
L_kvend:
s_cmp_lg_u32 s20, 4
s_cbranch_scc1 L_kvnc
s_lshl_b32 s30, s21, 9
s_add_u32 s30, s30, {WS_FLAG}
s_lshl_b32 s31, s22, 5
s_add_u32 s33, s30, s31
s_lshl_b32 s31, s22, 2
s_add_u32 s30, s30, s31
s_getreg_b32 s31, hwreg(HW_REG_XCC_ID, 0, 4)
s_mov_b64 exec, 3
v_mov_b32 v244, s31
buffer_store_dwordx4 v[16:19], v1, s[8:11], s33 offen offset:256 sc1
s_mov_b64 exec, 1
buffer_store_dword v244, v1, s[8:11], s30 offen sc1
L_kvnc:
s_mov_b64 exec, -1
""")
    def xread(c):
        for k in range(4):
            a(f"ds_read_b128 {r(xfrag(c,k),4)}, v{XA+4*(c&1)+k} offset:{((c>>1)&2)*16384}")
    def xcopy():
        def xadd(expr):
            a(expr)
            for s in range(8): a(f"v_add_u32 v{XA+s}, s33, v{XA+s}")
        xadd("s_lshr_b32 s30, s56, 1\ns_lshl_b32 s30, s30, 14\ns_mov_b32 s33, s30")
        xread(0); xread(1); xread(4)
        a("s_waitcnt lgkmcnt(8)")
        xread(5)
        xadd("s_lshl_b32 s33, s30, 1\ns_sub_u32 s33, 16384, s33")
        a("s_waitcnt lgkmcnt(4)")
        xread(2); xread(3)
        a("s_waitcnt lgkmcnt(4)")
        for i in range(4): a(f"s_xor_b32 s33, s46, {i}\ns_mul_i32 s33, s33, 5120\nv_add_u32 v{TY+i}, s33, v153")
    a("s_branch L_q0\nL_oload:")
    if not P.wpre:
        wq5(a, SLOT[0], 0)
        if P.early1: wq5(a, SLOT[1], 1)
    if P.ocopy: xcopy()
    a(f"s_waitcnt vmcnt({5 if (P.early1 or P.wpre) else 0})\nL_q0:")
    stamp(a, 'x0')
    def toff(c): return CSL[c] - SB if CSL[c] >= SB else CSL[c]
    def trread(c):
        o = toff(c)
        L = []
        for k in range(4):
            L.append(f"ds_read_b64_tr_b16 {r(AF[c%2]+4*k,2)}, v{TA+k} offset:{o}")
            L.append(f"ds_read_b64_tr_b16 {r(AF[c%2]+4*k+2,2)}, v{TA+k} offset:{o + 256}")
            L.append(f"ds_read_b64_tr_b16 {r(YF[c%2]+4*k,2)}, v{TY+k} offset:{o}")
            L.append(f"ds_read_b64_tr_b16 {r(YF[c%2]+4*k+2,2)}, v{TY+k} offset:{o + 256}")
        return L
    def xread(c):
        for k in range(4):
            a(f"ds_read_b128 {r(xfrag(c,k),4)}, v{XA+4*(c&1)+k} offset:{((c>>1)&2)*16384}")
    def mm(c, k):
        if c < 9: k = P.mo[k]
        if k < 4: a(f"v_mfma_f32_32x32x16_bf16 {r(ACC[0],16)}, {r(AF[c%2]+4*k,4)}, {r(xfrag(c,k),4)}, {r(ACC[0],16)}")
        else: a(f"v_mfma_f32_16x16x32_bf16 {r(ACC[1],4)}, {r(YF[c%2]+4*(k-4),4)}, {r(xfrag(c,k-4),4)}, {r(ACC[1],4)}")
    a("s_cmp_lt_u32 s20, 4\ns_cselect_b64 vcc, -1, 0\nv_mov_b32 v155, 0\ns_mov_b32 s52, 0")
    PC = P.pc; KVE = P.kve; NKE = sum(KVE)
    def later(c): return 0 if c <= PC else 1 + sum(KVE[:c-PC])
    def pollissue():
        a("buffer_load_dword v254, v1, s[8:11], s51 offen sc1\nbuffer_load_dword v255, v1, s[8:11], s51 offen offset:1024 sc1")
    WN = {1: 5, 2: 5, 3: 5, 4: 5, 5: 5, 6: 5, 7: 5, 8: 0, 9: 0}
    for c in range(10):
        own = "s_cbranch_vccnz" if c % 2 == 0 else "s_cbranch_vccz"
        if c > 0:
            a("s_waitcnt lgkmcnt(0)")
            if c == 9: stamp(a, 'y3')
            if c == 1 and P.o2: a("s_waitcnt vmcnt(10)\ns_cbranch_vccnz L_qw1\ns_waitcnt vmcnt(0)\nL_qw1:")
            elif c == 2 and P.o2: a("s_cbranch_vccz L_qw2\ns_waitcnt vmcnt(5)\nL_qw2:")
            elif c == 1: a("s_waitcnt vmcnt(5)")
            elif c == 2: a(f"{own} L_qw{c}\ns_waitcnt vmcnt(6)\ns_cmp_eq_u32 s20, 4\ns_cbranch_scc1 L_qw{c}\ns_waitcnt vmcnt(5)\nL_qw{c}:")
            else: a(f"{own} L_qw{c}\ns_waitcnt vmcnt({WN[c] + later(c)})\nL_qw{c}:")
        if c == PC: stamp(a, 'w7')
        if c == 9: stamp(a, 'y4')
        if c == PC:
            a(f"""
s_cmp_lg_u32 s20, 4
s_cbranch_scc1 L_pdone
s_mov_b32 s30, 0
s_lshl_b32 s31, s23, 7
s_waitcnt vmcnt({5 if P.pi == 5 else 0})
L_poll:
v_cmp_eq_u32 s[4:5], v254, v252
v_cmp_eq_u32 s[48:49], v255, v253
s_add_u32 s30, s30, 1
s_nop 0
s_or_b64 s[4:5], s[4:5], s[48:49]
s_cbranch_scc0 L_pdone
s_cmp_ge_u32 s30, {P.spin_max}
s_cbranch_scc1 L_pdone
s_cmp_lg_u32 s30, 1
s_cbranch_scc1 L_pna
v_mov_b32 v190, 1
s_mov_b32 s52, 1
s_mov_b64 exec, 1
buffer_atomic_add v190, v155, s[72:75], s31 offen
s_mov_b64 exec, -1
L_pna:
s_and_b32 s33, s30, 7
s_cbranch_scc1 L_pnc
buffer_load_dword v190, v155, s[72:75], s31 offen sc1
s_waitcnt vmcnt(0)
v_readfirstlane_b32 s33, v190
s_nop 3
s_cmp_ge_u32 s33, 128
s_cbranch_scc1 L_pdone
L_pnc:
s_sleep {P.psleep}
""")
            pollissue()
            a("s_waitcnt vmcnt(0)\ns_branch L_poll\nL_pdone:")
        a("s_barrier")
        stamp(a, f'c{c}')
        if c == 1:
            a(f"""
s_cmp_lg_u32 s20, 4
s_cbranch_scc1 L_nf
s_and_b32 s33, s50, 63
v_readlane_b32 s30, v252, s33
v_readlane_b32 s31, v253, s33
s_cmp_lt_u32 s50, 64
s_nop 2
s_cselect_b32 s30, s30, s31
s_add_u32 s30, s30, 1
v_mov_b32 v190, s30
s_lshl_b32 s33, s50, 4
s_add_u32 s33, s33, s51
s_mov_b64 exec, 1
buffer_store_dword v190, v155, s[8:11], s33 offen sc1
s_mov_b64 exec, -1
L_nf:
""")
        if c == P.pi:
            a("s_cmp_lg_u32 s20, 4\ns_cbranch_scc1 L_np"); pollissue(); a("L_np:")
        if c == 0:
            if P.ocopy:
                a("s_cbranch_vccnz L_i0o")
                if not P.o2: wq5(a, CSL[2], 2)
                xcopy()
                a("s_branch L_i0e\nL_i0o:")
                if P.o2: wq5(a, CSL[2], 2)
                wq5(a, CSL[3], 3)
                a("L_i0e:")
            else:
                def xadd(expr):
                    a(expr)
                    for s in range(8): a(f"v_add_u32 v{XA+s}, s33, v{XA+s}")
                xadd("s_lshr_b32 s30, s56, 1\ns_lshl_b32 s30, s30, 14\ns_mov_b32 s33, s30")
                xread(0); xread(1); xread(4)
                a("s_cbranch_vccnz L_i0o")
                wq5(a, CSL[2], 2)
                a("s_branch L_i0e\nL_i0o:")
                if not P.early1: wq5(a, CSL[1], 1)
                a("L_i0e:\ns_waitcnt lgkmcnt(0)")
                xread(5)
                xadd("s_lshl_b32 s33, s30, 1\ns_sub_u32 s33, 16384, s33")
                xread(2); xread(3)
                a("s_cbranch_vccz L_i0f")
                wq5(a, CSL[3], 3)
                a("L_i0f:\ns_waitcnt lgkmcnt(4)")
                xread(6); xread(7)
                xadd("s_add_u32 s33, s30, 49152")
                a("s_waitcnt lgkmcnt(4)")
            for i_, l in enumerate(trread(0)):
                if i_ == 8: a('s_waitcnt lgkmcnt(6)')
                a(l)
            continue
        if c == 9: break
        TL = trread(c)
        if c == PC:
            a(f"""
s_lshl_b32 s33, s23, 10
s_add_u32 s33, s33, {WS_KMAX}
buffer_load_dwordx4 v[12:15], v1, s[8:11], s33 offen sc1
s_lshl_b32 s7, s20, 10
s_add_u32 s6, s26, s3
s_add_u32 s6, s6, s7
""")
        ld = "s_cbranch_vccz" if c % 2 == 0 else "s_cbranch_vccnz"
        for i in range(8):
            mm(c-1, i)
            lo = sum(P.tp[:i]); hi = lo + P.tp[i]
            if lo <= 15 < hi + 0 or (hi > 15 and lo < 16 and lo > 0 and False): a('s_waitcnt lgkmcnt(8)')
            for l in TL[lo:hi]: a(l)
            if i == 6 and c in (3, 4, 7, 8):
                a("s_waitcnt lgkmcnt(8)")
                xread({3: 6, 4: 7, 7: 8, 8: 9}[c])
            if i == 7 and c == 4:
                a("s_lshr_b32 s33, s56, 1\ns_lshl_b32 s33, s33, 14\ns_add_u32 s33, s33, 49152")
                for s in range(8): a(f"v_add_u32 v{XA+s}, s33, v{XA+s}")
            if c <= 6 and i < 5:
                if i == 0: wq_set(a, c+3)
                a(f"{ld} L_qd{c}_{i}\ns_add_u32 m0, s28, {CSL[c+3] + i*960}\ns_nop 0\nbuffer_load_dwordx4 v5, s[16:19], s34 offen offset:{64*i} lds")
                a(f"L_qd{c}_{i}:")
            if c in (5, 6):
                for z in range(80 + 16*(c-5) + 2*i, 80 + 16*(c-5) + 2*i + 2): a(f"v_mov_b32 v{z}, 0")
            if PC <= c < PC + len(KVE) and i < KVE[c-PC]:
                a("s_mov_b32 m0, s7\ns_add_u32 s7, s7, 8192\nbuffer_load_dwordx4 v1, s[8:11], s6 offen sc1 lds\ns_add_u32 s6, s6, 8192")
    def kmred(n):
        L = [f"s_waitcnt vmcnt({n})", "v_max3_f32 v12, v12, v13, v14", "v_max_f32 v12, v12, v15"]
        for rr in (8, 4, 2, 1): L += ["s_nop 1", f"v_max_f32_dpp v12, v12, v12 row_ror:{rr} row_mask:0xf bank_mask:0xf"]
        L += ["v_mov_b32 v13, v12", "s_nop 1", "v_permlane16_swap_b32 v12, v13", "v_max_f32 v12, v12, v13", "v_mov_b32 v13, v12", "s_nop 1",
              "v_permlane32_swap_b32 v12, v13", "v_add_f32 v12, v12, v13", "v_sqrt_f32 v12, v12", "s_nop 0", "v_mul_f32 v12, 0xbf8147ae, v12"]
        return L
    firstreads = f"""
ds_read_b128 {r(K16[0],4)}, v{AK} offset:0
ds_read_b128 {r(K16[1],4)}, v{AK} offset:1024
ds_read_b128 {r(K4,4)}, v{AK} offset:4096
s_mov_b64 exec, s[30:31]
ds_read_b128 {r(V[0][0],4)}, v{AV} offset:5120
ds_read_b128 {r(V[0][1],4)}, v{AV} offset:5760
s_mov_b64 exec, -1
"""
    R9 = trread(9)
    def mm8(extra, n):
        L = kmred(n)
        for i in range(8):
            mm(8, i)
            if extra:
                if i == 3: a("s_waitcnt lgkmcnt(6)")
                for l in R9[4*i:4*i+4]: a(l)
            if i >= 5 or not extra:
                j = (i-5) if extra else None
                for l in (L[8*j:8*j+8] if extra else L[3*i:3*i+3]): a(l)
    a("s_mov_b32 s30, 0x000fffff\ns_mov_b32 s31, 0x000fffff\ns_cbranch_vccz L_bwave\ns_setprio 2")
    mm8(True, NKE)
    a("s_waitcnt vmcnt(0) lgkmcnt(0)\ns_barrier")
    stamp(a, 6)
    a("L_tJ:")
    for k in range(4):
        mm(9, k)
        if k == 0: a(firstreads)
        elif k < 3:
            for z in range(72 + 4*(k-1), 76 + 4*(k-1)): a(f"v_mov_b32 v{z}, 0")
    XF_ = []
    for t in range(2):
        for i in range(4): XF_.append(f"v_cvt_pk_bf16_f32 v{Q16[t]+i}, v{16+8*t+2*i}, v{17+8*t+2*i}")
    for t in range(2):
        XF_.append(f"v_mul_f32 v{68+t}, v{16+8*t}, v{16+8*t}")
        for i in range(1, 8): XF_.append(f"v_fmac_f32 v{68+t}, v{16+8*t+i}, v{16+8*t+i}")
    mm(9, 4); mm(9, 5); mm(9, 6); mm(9, 7); a("s_nop 7")
    for l in XF_: a(l)
    a("v_mov_b32 v48, v68\nv_mov_b32 v49, v69")
    stamp(a, 5)
    def qfin(a):
        a(f"""
v_cvt_pk_bf16_f32 v{Q4}, v32, v33
v_cvt_pk_bf16_f32 v{Q4+1}, v34, v35
v_mul_f32 v56, v32, v32
v_fmac_f32 v56, v33, v33
v_fmac_f32 v56, v34, v34
v_fmac_f32 v56, v35, v35
s_mov_b32 exec_hi, 0
v_add_f32 v48, v48, v56
s_mov_b64 exec, -1
s_mov_b32 exec_lo, 0
v_add_f32 v49, v49, v56
s_mov_b64 exec, -1
v_mov_b32 v50, v48
v_mov_b32 v51, v49
s_nop 0
v_permlane32_swap_b32 v48, v50
v_permlane32_swap_b32 v49, v51
v_add_f32 v48, v48, v50
v_add_f32 v49, v49, v51
v_sqrt_f32 v48, v48
v_sqrt_f32 v49, v49
v_mov_b32 v51, 0xc2200000
""")
    def bound(a):
        a("""
v_mul_f32 v48, v48, v12
v_mul_f32 v49, v49, v12
v_min_f32 v50, v48, v49
v_cmp_nge_f32 vcc, v50, v51
""")
    qfin(a)
    bound(a)
    ma = (1 << P.sync_iter) | (15 << P.pf_a) | (1 << P.prio_switch) | (1 << 15)
    mb = (15 << P.pf_b) | (1 << 15)
    assert P.sync_iter < P.pf_a and P.pf_a + 3 < P.prio_switch
    a(f"""
s_mov_b32 s35, {ma}
s_mov_b32 s32, {P.pf_a}
s_cmp_lt_u32 s20, 4
s_cbranch_scc0 L_bw2
s_cmp_lg_u64 vcc, 0
s_cbranch_scc1 L_aslow
L_go:
""")
    for i in range(0, 16, 2):
        a(f"v_pk_mov_b32 {r(NEGM+i,2)}, v[48:49], v[48:49] op_sel:[0,0]")
    for i in range(0, 16, 2):
        a(f"v_pk_mov_b32 {r(NEGM+16+i,2)}, v[48:49], v[48:49] op_sel:[1,1]")
    a(f"""
s_waitcnt lgkmcnt(0)
""")
    stamp(a, 7)
    if P.diag: a("s_memrealtime s[98:99]")
    a(f"""
s_nop 0
v_mfma_f32_32x32x16_bf16 {r(S[0],16)}, {r(K16[0],4)}, {r(Q16[0],4)}, {r(NEGM,16)}
v_mfma_f32_32x32x16_bf16 {r(S[0]+16,16)}, {r(K16[0],4)}, {r(Q16[1],4)}, {r(NEGM+16,16)}
s_nop 9
v_mfma_f32_32x32x4_2b_bf16 {r(S[0],32)}, {r(K4,2)}, {r(Q4,2)}, {r(S[0],32)} cbsz:1 abid:0
s_mov_b32 s34, 0
s_cmp_lt_u32 s20, 4
s_nop 15
s_nop 1
s_cbranch_scc1 L_loop
s_setprio 1
""")
    pro = list(a.lines)
    a(".p2align 6")
    a("L_loop:")
    body = Asm()
    for j in range(4): step(body, j, P.sched)
    for e in check(body.lines + body.lines, "loop"): print(e)
    for e in check(pro + body.lines, "pro"): print(e)
    a.lines += body.lines
    a("""
s_add_u32 s34, s34, 1
s_bitcmp1_b32 s35, s34
s_cbranch_scc0 L_loop
s_cmp_lt_u32 s34, 15
s_cbranch_scc1 L_event
""")
    ep = Asm()
    stamp(ep, 'v6')
    def fragreg(n): return WPF + 4*n if n < 16 else (NEGM + 4*(n-16) if n < 24 else 168)
    for j in range(4):
        extra = None
        if j == 3: extra = {2 + 3*i: (lambda n=16+i: wo_load(ep, n, fragreg(n))) for i in range(8)}
        step(ep, j, P.sched, last=True, extra=extra)
    ep("s_nop 1")
    ep(f"v_smfmac_f32_32x32x32_bf16 {r(O[1],16)}, {r(V[1][1],4)}, {r(S[1]+24,8)}, v{IDX}")
    ep("s_setprio 0\ns_waitcnt vmcnt(8)")
    stamp(ep, 8)
    if P.diag: ep("s_memrealtime s[96:97]")
    ep(f"""
s_getreg_b32 s33, hwreg(HW_REG_XCC_ID, 0, 4)
s_nop 0
v_cmp_ne_u32 vcc, s33, v11
s_cmp_eq_u64 vcc, 0
s_cselect_b32 s25, {P.fast}, 0
s_lshl_b32 s26, s21, 3
s_add_u32 s34, s26, s22
s_mul_i32 s34, s34, 20480
s_add_u32 s26, s26, s20
s_mul_i32 s26, s26, 20480
s_add_u32 s26, s26, {WS_O}
s_mul_i32 s33, s47, 10240
s_add_u32 s34, s34, s33
s_add_u32 s34, s34, {WS_O}
s_lshl_b32 s35, s46, 10
s_add_u32 s35, s35, s34
s_lshl_b32 s28, s46, 8
s_add_u32 s28, s28, s34
s_add_u32 s28, s28, 4096
v_and_b32 v12, 15, v2
v_bfe_u32 v13, v2, 4, 1
v_mul_u32_u24 v13, 5120, v13
v_lshl_add_u32 v14, v12, 4, v13
v_lshl_add_u32 v15, v4, 8, v14
""")
    for t in range(2):
        ep(f"v_rcp_f32 v{12+t}, v{O[t]+12}")
    ep("s_nop 0")
    for t in range(2):
        ep(f"v_mul_f32 v{12+t}, v{12+t}, v10")
    for t in range(2):
        for i in range(12):
            ep(f"v_mul_f32 v{O[t]+i}, v{O[t]+i}, v{12+t}")
        for i in range(4):
            ep(f"v_cvt_pk_bf16_f32 v{172+4*t+i}, v{O[t]+2*i}, v{O[t]+2*i+1}")
        for i in range(2):
            ep(f"v_cvt_pk_bf16_f32 v{180+2*t+i}, v{O[t]+8+2*i}, v{O[t]+9+2*i}")
    ep("s_cmp_eq_u32 s25, 0\ns_cbranch_scc1 L_st1")
    for sc, tail in ((P.o_sc, "s_branch L_st2\nL_st1:"), ("sc1", "L_st2:")):
        for t in range(2):
            ep(f"buffer_store_dwordx4 {r(172+4*t,4)}, v15, s[8:11], s35 offen offset:{512*t} {sc}")
        ep(f"s_mov_b32 exec_hi, 0\nbuffer_store_dwordx4 v[180:183], v14, s[8:11], s28 offen {sc}\n{tail}")
    ep(f"""
s_mov_b64 exec, -1
s_mul_i32 s28, s20, 20480
v_add_u32 v5, s28, v1
""")
    BFR = 88; WL2 = 52
    for nt in range(4):
        ep(f"s_add_u32 s33, s22, {nt}\ns_and_b32 s33, s33, 3\ns_mul_i32 s33, s33, 5120\nv_add_u32 v{6+nt}, s33, v5\ns_add_u32 s{40+2*nt}, s26, s33\ns_add_u32 s{41+2*nt}, s{40+2*nt}, 1024")
    srd(ep, 12, 58, 2048*1280)
    ep(f"""
s_lshl_b32 s30, s21, 9
s_add_u32 s30, s30, {WS_FLAG + 256}
s_lshl_b32 s31, s22, 5
s_add_u32 s31, s31, s30
s_lshl_b32 s33, s20, 2
s_add_u32 s31, s31, s33
s_lshl_b32 s33, s20, 5
s_add_u32 s30, s30, s33
v_lshlrev_b32 v15, 2, v2
v_mov_b32 v14, 1
s_mov_b64 exec, 1
""")
    stamp(ep, 'e1')
    ep(f"""
s_cmp_eq_u32 s25, 0
s_waitcnt vmcnt(0)
s_cbranch_scc1 L_fl1
buffer_store_dword v14, v15, s[8:11], s31 offen
s_branch L_fl2
L_fl1:
buffer_store_dword v14, v15, s[8:11], s31 offen sc1
s_waitcnt vmcnt(0)
L_fl2:
""")
    if P.p1first: ep("s_barrier")
    stamp(ep, 9)
    ep(f"""
s_mov_b32 s33, 0
s_mov_b64 exec, 0xff
L_poll2:
buffer_load_dword v14, v15, s[8:11], s30 offen sc1
s_add_u32 s33, s33, 1
s_waitcnt vmcnt(0)
v_cmp_ne_u32 vcc, 1, v14
s_cmp_eq_u64 vcc, 0
s_cbranch_scc1 L_p2ok
s_cmp_ge_u32 s33, {P.spin_max}
s_cbranch_scc1 L_p2ok
s_sleep {P.probe_sleep}
s_branch L_poll2
L_p2ok:
s_mov_b64 exec, -1
""")
    def frag(s_, mt):
        return fragreg(5*s_ + mt)
    def breg(nt, s_): return (52 + 20*nt if nt < 3 else 144) + 4*s_
    stamp(ep, 10)
    AC2 = [12, 32]
    def mblock(sc):
        def bl(nt, s_):
            if s_ == 0: ep(f"buffer_load_dwordx4 {r(breg(nt,0),4)}, v1, s[8:11], s{40+2*nt} offen {sc}")
            else: ep(f"buffer_load_dwordx4 {r(breg(nt,s_),4)}, v1, s[8:11], s{41+2*nt} offen offset:{(s_-1)*1024} {sc}")
        LEAD = P.lead
        seq = [(nt, s_) for nt in range(4) for s_ in range(5)]
        for i in range(LEAD): bl(*seq[i])
        issued = LEAD
        stamp(ep, 'e3')
        for i, (nt, s_) in enumerate(seq):
            acc = AC2[nt % 2]
            if s_ == 0 and P.mprio: ep(f"s_setprio {3-nt}")
            if (nt, s_) == (1, 0) and not P.p1first: ep("s_barrier")
            ep(f"s_waitcnt vmcnt({issued - i - 1})")
            if i == 0: stamp(ep, 'e4')
            for mt in range(5):
                c = "0" if s_ == 0 else r(acc+4*mt,4)
                ep(f"v_mfma_f32_16x16x32_bf16 {r(acc+4*mt,4)}, {r(frag(s_,mt),4)}, {r(breg(nt,s_),4)}, {c}")
                if mt == 0 and issued < 20: bl(*seq[issued]); issued += 1
                if P.wbl2 and i == 19 - 0 and mt == 1: ep(f"s_cmp_lg_u32 s20, 0\ns_cbranch_scc1 L_nwb\nbuffer_wbl2 sc1\nL_nwb:")
                if nt > 0 and P.wspread and mt == 3:
                    pa = AC2[(nt-1) % 2]
                    ep(f"ds_write_b128 v{6+nt-1}, {r(pa+4*s_,4)} offset:{s_*1024}")
            if s_ == 2 and nt > 0 and not P.wspread:
                pa = AC2[(nt-1) % 2]
                for mt in range(5):
                    ep(f"ds_write_b128 v{6+nt-1}, {r(pa+4*mt,4)} offset:{mt*1024}")
    mblock('sc1')
    stamp(ep, 'e5')
    if P.restore:
        ep(f"""
s_cmp_eq_u32 s25, 0
s_cbranch_scc1 L_nrs
buffer_store_dwordx4 v[172:175], v185, s[8:11], s53 offen sc1
buffer_store_dwordx4 v[176:179], v185, s[8:11], s53 offen offset:512 sc1
s_mov_b32 exec_hi, 0
buffer_store_dwordx4 v[180:183], v184, s[8:11], s54 offen sc1
s_mov_b64 exec, -1
L_nrs:
""")
    ep("s_nop 4")
    for mt in range(5):
        ep(f"ds_write_b128 v9, {r(AC2[1]+4*mt,4)} offset:{mt*1024}")
    ep(f"""
v_and_b32 v6, 15, v2
v_lshrrev_b32 v7, 4, v2
v_mul_u32_u24 v6, 1280, v6
v_lshl_add_u32 v6, v7, 3, v6
s_mul_i32 s26, s21, {64*1280}
s_mul_i32 s27, s22, 160
s_add_u32 s26, s26, s27
s_mov_b32 s28, s20
s_waitcnt lgkmcnt(0)
s_barrier
""")
    stamp(ep, 'e6')
    ep("s_lshl_b32 s33, s20, 10\nv_add_u32 v7, s33, v1\nv_add_u32 v8, 0xa000, v7\nv_add_u32 v9, 0x14000, v7\nv_add_u32 v10, 0x1e000, v7")
    def rd(u):
        for p in range(8):
            ep(f"ds_read_b128 {r(64+32*u+4*p,4)}, v{7+p//2} offset:{(p%2)*20480 + u*8192}")
    def fin(u):
        b = 64 + 32*u
        ep(f"""
s_add_u32 s28, s20, {8*u}
s_mul_i32 s33, s28, 52
s_lshr_b32 s33, s33, 8
s_mul_i32 s34, s33, {16*1280 - 5*32}
s_lshl_b32 s35, s28, 5
s_add_u32 s34, s34, s35
s_add_u32 s34, s34, s26
""")
        for i in range(4):
            for p in range(0, 8, 2): ep(f"v_add_f32 v{b+4*p+i}, v{b+4*p+i}, v{b+4+4*p+i}")
        for i in range(4):
            ep(f"v_add_f32 v{b+i}, v{b+i}, v{b+8+i}")
            ep(f"v_add_f32 v{b+16+i}, v{b+16+i}, v{b+24+i}")
        for i in range(4): ep(f"v_add_f32 v{b+i}, v{b+i}, v{b+16+i}")
        ep(f"""
v_cvt_pk_bf16_f32 v{b+4}, v{b}, v{b+1}
v_cvt_pk_bf16_f32 v{b+5}, v{b+2}, v{b+3}
buffer_store_dwordx2 {r(b+4,2)}, v6, s[12:15], s34 offen {P.out_sc}
""")
    rd(0)
    ep("s_waitcnt lgkmcnt(7)")
    rd(1)
    ep("s_waitcnt lgkmcnt(8)")
    fin(0)
    ep("s_cmp_lt_u32 s20, 4\ns_cbranch_scc0 L_f2")
    ep("s_waitcnt lgkmcnt(0)")
    rd(2)
    fin(1)
    ep("s_waitcnt lgkmcnt(0)")
    fin(2)
    ep("s_branch L_f3\nL_f2:\ns_waitcnt lgkmcnt(0)")
    fin(1)
    ep("L_f3:")
    if P.diag:
        ex = {'all': "s_sub_u32 s90, s94, s100", 'pre': "s_sub_u32 s90, s98, s100", 'post': "s_sub_u32 s90, s94, s96", 'zero': "s_mov_b32 s90, 0"}[P.diag]
        ep(f"""
s_waitcnt vmcnt(0)
s_cmp_lg_u32 s20, 0
s_cbranch_scc1 L_end
s_memrealtime s[94:95]
s_waitcnt lgkmcnt(0)
{ex}
L_dg:
s_memrealtime s[92:93]
s_waitcnt lgkmcnt(0)
s_sub_u32 s91, s92, s94
s_cmp_lt_u32 s91, s90
s_cbranch_scc1 L_dg
""")
    if P.timing:
        ep("s_waitcnt vmcnt(0)")
        stamp(ep, 11)
        ep("s_memrealtime s[4:5]\ns_waitcnt lgkmcnt(0)")
        for i in range(NST): ep(f"v_mov_b32 v{40+i}, s{76+2*i}")
        ep(f"""
v_mov_b32 v52, s100
v_mov_b32 v53, s4
v_mov_b32 v54, 0
v_mov_b32 v55, 0
s_lshl_b32 s26, s2, 3
s_add_u32 s26, s26, s20
s_lshl_b32 s26, s26, 6
s_add_u32 s26, s26, {WS_TIME}
v_mov_b32 v9, 0
s_mov_b64 exec, 1
""")
        for i in range(4): ep(f"buffer_store_dwordx4 {r(40+4*i,4)}, v9, s[8:11], s26 offen offset:{16*i}")
    for e in check(body.lines + ["s_nop 3"] + ep.lines, "epi"): print(e)
    a.lines += ep.lines
    a("L_end:\ns_endpgm")
    x = Asm()
    x(f"""
L_event:
s_sub_u32 s33, s34, s32
s_cmp_eq_u32 s33, 0
s_cbranch_scc1 L_pf
s_cmp_eq_u32 s33, 1
s_cbranch_scc1 L_pf1
s_cmp_eq_u32 s33, 2
s_cbranch_scc1 L_pf2
s_cmp_eq_u32 s33, 3
s_cbranch_scc1 L_pf3
s_cmp_eq_u32 s34, {P.prio_switch}
s_cbranch_scc1 L_ev2
""")
    stamp(x, 'v0')
    x("s_barrier")
    stamp(x, 'v1')
    x("s_branch L_loop\nL_ev2:")
    stamp(x, 'v5')
    x("s_setprio 0\ns_branch L_loop\nL_pf:")
    stamp(x, 'v2')
    x(f"""
v_lshlrev_b32 v5, 2, v2
s_mov_b32 s33, 0
L_poll3:
buffer_load_dword v6, v5, s[72:75], 0 offen sc1
s_add_u32 s33, s33, 1
s_waitcnt vmcnt(0)
s_add_u32 s28, s22, 8
v_readlane_b32 s4, v6, 0
v_readlane_b32 s5, v6, 32
v_readlane_b32 s28, v6, s28
s_nop 3
s_min_u32 s4, s4, s5
s_lshl_b32 s28, s28, 2
s_min_u32 s4, s4, s28
s_cmp_ge_u32 s4, 128
s_cbranch_scc1 L_p3ok
s_cmp_ge_u32 s33, {P.spin_max}
s_cbranch_scc1 L_p3ok
s_sleep 8
s_branch L_poll3
L_p3ok:
""")
    stamp(x, 'v3')
    x(f"""
s_lshl_b32 s28, s21, 9
s_add_u32 s28, s28, {WS_FLAG}
v_and_b32 v5, 7, v2
v_lshlrev_b32 v5, 2, v5
buffer_load_dword v11, v5, s[8:11], s28 offen sc1
v_lshlrev_b32 v5, 2, v2
buffer_load_dword v6, v5, s[8:11], s28 offen offset:256 sc1
s_lshl_b32 s28, s23, 13
s_lshl_b32 s33, s21, 8
s_add_u32 s28, s28, s33
s_lshl_b32 s33, s47, 7
s_add_u32 s28, s28, s33
s_add_u32 s28, s28, {WS_GATE}
buffer_load_dword v10, v191, s[8:11], s28 offen sc1
s_lshl_b32 s33, s21, 3
s_add_u32 s33, s33, s22
s_mul_i32 s33, s33, 20480
s_mul_i32 s28, s20, 2560
s_add_u32 s33, s33, s28
s_add_u32 s33, s33, {WS_O}
buffer_load_dwordx4 {r(WPF,4)}, v1, s[8:11], s33 offen sc1
buffer_load_dwordx4 {r(WPF,4)}, v1, s[8:11], s33 offen offset:1024 sc1
buffer_load_dwordx4 {r(WPF,4)}, v1, s[8:11], s33 offen offset:1536 sc1
""")
    x("s_branch L_loop\nL_pf1:")
    for n in range(16, 24): wo_load(x, n, WPF + 4*(n-16))
    wo_load(x, 24, 168)
    x("s_branch L_loop\nL_pf2:")
    for n in range(8): wo_load(x, n, WPF + 4*n)
    x("s_branch L_loop\nL_pf3:")
    for n in range(8, 16): wo_load(x, n, WPF + 4*n)
    stamp(x, 'v4')
    x("s_branch L_loop")
    x(f"""
L_aslow:
s_setprio 1
s_barrier
s_branch L_slow
L_bwave:
""")
    for i, l in enumerate(R9):
        if i == 12: x('s_waitcnt lgkmcnt(6)')
        x(l)
    x(f"""
s_waitcnt vmcnt(0) lgkmcnt(0)
s_barrier
s_cmp_eq_u32 s20, 4
s_cbranch_scc1 L_rpl
s_sub_u32 s33, s20, 5
s_lshl_b32 s33, s33, 10
s_add_u32 s33, s33, {NKE*8192}
L_dma:
""")
    kvdma(x, 1)
    x(f"""
s_add_u32 s33, s33, 3072
s_cmp_lt_u32 s33, {RB}
s_cbranch_scc1 L_dma
L_rplb:
s_setprio 3
""")
    main = a
    a = x
    mm8(False, 63)
    a = main
    x(f"""
s_branch L_tJ
L_bw2:
s_cmp_eq_u32 s20, 4
s_cbranch_scc1 L_repack
s_waitcnt vmcnt(0)
L_bsync:
s_setprio {P.bprio2}
s_barrier
s_cmp_lg_u64 vcc, 0
s_cbranch_scc1 L_slow
L_nosync:
s_mov_b32 s35, {mb}
s_mov_b32 s32, {P.pf_b}
s_branch L_go
""")
    x(f"""
L_rpl:
s_cmp_eq_u32 s52, 1
s_cbranch_scc1 L_rpa
v_mov_b32 v5, 1
v_mov_b32 v6, 0
s_lshl_b32 s33, s23, 7
s_mov_b64 exec, 1
buffer_atomic_add v5, v6, s[72:75], s33 offen
s_mov_b64 exec, -1
L_rpa:
s_cmp_lt_u32 s2, 128
s_cselect_b32 s4, s44, s54
s_cselect_b32 s5, s45, s55
s_mov_b32 s6, 819200
s_mov_b32 s7, 0x00020000
s_bfe_u32 s33, s2, 0x20005
s_mul_i32 s33, s33, 160
s_and_b32 s34, s2, 3
s_mul_i32 s34, s34, 40
s_add_u32 s33, s33, s34
s_mul_i32 s33, s33, 1280
s_bfe_u32 s34, s2, 0x30002
s_mul_i32 s34, s34, 160
s_add_u32 s33, s33, s34
""")
    for i in range(7):
        x(f"v_add_u32 v5, {64*i}, v2")
        x(f"v_mul_u32_u24 v6, 52429, v5")
        x(f"v_lshrrev_b32 v6, 19, v6")
        x(f"v_mul_u32_u24 v6, 1120, v6")
        x(f"v_lshl_add_u32 v6, v5, 4, v6")
        x(f"s_mov_b32 m0, {RB + i*1024}")
        x("s_nop 0")
        x(f"buffer_load_dwordx4 v6, s[4:7], s33 offen lds")
    x(f"""
s_branch L_rplb
L_repack:
v_and_b32 v6, 15, v2
v_lshrrev_b32 v7, 4, v2
v_and_b32 v8, 3, v6
v_lshlrev_b32 v8, 3, v8
v_lshrrev_b32 v9, 2, v6
v_mul_u32_u24 v9, 160, v9
s_mov_b32 s33, {RB}
v_add3_u32 v8, v8, v9, s33
v_lshrrev_b32 v9, 1, v7
v_mul_u32_u24 v9, 3200, v9
v_and_b32 v11, 1, v7
v_mul_u32_u24 v11, 640, v11
v_add3_u32 v9, v9, v11, v8
v_lshl_add_u32 v11, v7, 5, v8
v_lshlrev_b32 v13, 4, v6
v_lshl_add_u32 v13, v7, 10, v13
s_waitcnt vmcnt(0) lgkmcnt(0)
""")
    RF = 224
    for mt in range(5):
        x(f"ds_read_b64_tr_b16 {r(RF+4*mt,2)}, v9 offset:{mt*32}")
        x(f"ds_read_b64_tr_b16 {r(RF+2+4*mt,2)}, v9 offset:{mt*32+1280}")
    x(f"""
ds_read_b64_tr_b16 {r(RF+20,2)}, v11 offset:2560
ds_read_b64_tr_b16 {r(RF+22,2)}, v11 offset:5760
ds_read_b64_tr_b16 {r(RF+24,2)}, v8 offset:{2560+128}
ds_read_b64_tr_b16 {r(RF+26,2)}, v8 offset:{5760+128}
s_bfe_u32 s4, s2, 0x30002
s_lshl_b32 s5, s4, 3
s_lshr_b32 s6, s2, 5
s_add_u32 s5, s5, s6
s_mul_i32 s5, s5, 25600
s_add_u32 s5, s5, {WS_WF}
s_and_b32 s6, s2, 3
s_mul_i32 s7, s6, 5120
s_add_u32 s7, s7, s5
s_lshl_b32 s6, s6, 8
s_add_u32 s5, s5, s6
s_add_u32 s5, s5, 20480
s_add_u32 s6, s7, 4096
s_waitcnt lgkmcnt(0)
""")
    for mt in range(4):
        x(f"buffer_store_dwordx4 {r(RF+4*mt,4)}, v1, s[8:11], s7 offen offset:{mt*1024} sc1")
    x(f"""
buffer_store_dwordx4 {r(RF+16,4)}, v1, s[8:11], s6 offen sc1
buffer_store_dwordx4 {r(RF+20,4)}, v13, s[8:11], s5 offen sc1
s_add_u32 s5, s5, 4096
s_mov_b64 exec, 0xffff
buffer_store_dwordx4 {r(RF+24,4)}, v13, s[8:11], s5 offen sc1
s_mov_b64 exec, -1
s_mov_b32 s33, {RB}
L_dma4:
""")
    kvdma(x, 1)
    x(f"""
s_add_u32 s33, s33, 1024
s_cmp_lt_u32 s33, {KVIMG}
s_cbranch_scc1 L_dma4
""")
    x(f"""
s_lshl_b32 s4, s4, 2
s_add_u32 s4, s4, 32
v_mov_b32 v5, 1
v_mov_b32 v6, 0
s_waitcnt vmcnt(0)
s_mov_b64 exec, 1
buffer_atomic_add v5, v6, s[72:75], s4 offen
s_mov_b64 exec, -1
s_branch L_bsync
""")
    for e in check(x.lines, "x"): print(e)
    a.lines += x.lines
    sl_ = Asm()
    sl_(f"""
L_slow:
v_mov_b32 v48, 0xff800000
v_mov_b32 v49, 0xff800000
v_mov_b32 v52, v{AK}
s_mov_b32 s34, 0
L_sl_loop:
ds_read_b128 {r(K4,4)}, v52 offset:4096
""")
    for j in range(4):
        sl_(f"ds_read_b128 {r(K16[0],4)}, v52 offset:{j*1024}")
        sl_("s_waitcnt lgkmcnt(0)")
        sl_(f"v_mfma_f32_32x32x4_2b_bf16 v[16:47], {r(K4+(2 if j>=2 else 0),2)}, {r(Q4,2)}, 0 cbsz:1 abid:{j&1}")
        sl_("s_nop 15\ns_nop 1")
        sl_(f"v_mfma_f32_32x32x16_bf16 v[16:31], {r(K16[0],4)}, {r(Q16[0],4)}, v[16:31]")
        sl_(f"v_mfma_f32_32x32x16_bf16 v[32:47], {r(K16[0],4)}, {r(Q16[1],4)}, v[32:47]")
        sl_("s_nop 11")
        for t in range(2):
            for i in range(0, 16, 2):
                sl_(f"v_max3_f32 v{48+t}, v{16+16*t+i}, v{17+16*t+i}, v{48+t}")
    sl_(f"""
v_add_u32 v52, s29, v52
s_add_u32 s34, s34, 1
s_cmp_lt_u32 s34, 16
s_cbranch_scc1 L_sl_loop
v_mov_b32 v50, v48
v_mov_b32 v51, v49
s_nop 1
v_permlane32_swap_b32 v48, v50
v_permlane32_swap_b32 v49, v51
s_nop 1
v_max_f32 v48, v48, v50
v_max_f32 v49, v49, v51
v_sub_f32 v48, 0, v48
v_sub_f32 v49, 0, v49
""")
    sl_(firstreads)
    sl_("s_branch L_nosync")
    for e in check(sl_.lines + sl_.lines, "slow"): print(e)
    a.lines += sl_.lines
    a("L_codeend:")
    return a

DOC = '''; ---------------------------------------------------------------------------------------------
; ---------------------------------------------------------------------------------------------
'''

def build():
    k = gen()
    name = NAME + "_kernel"
    head = open("cdna_kernels/%s.s.ref" % NAME).read().split("; Override launch")[0]
    out = head + "; @launch grid=(256,1,1) block=(512,1,1) lds=163840\n"
    out += '.amdgcn_target "amdgcn-amd-amdhsa--gfx950"\n' + DOC + '.text\n' + k.text()
    out += f""".section .rodata,"a"
.p2align 6
.amdhsa_kernel {name}
  .amdhsa_next_free_vgpr 256
  .amdhsa_next_free_sgpr 102
  .amdhsa_accum_offset 256
  .amdhsa_group_segment_fixed_size 0
  .amdhsa_kernarg_size 112
  .amdhsa_user_sgpr_count 2
  .amdhsa_user_sgpr_kernarg_segment_ptr 1
  .amdhsa_system_sgpr_workgroup_id_x 1
.end_amdhsa_kernel
"""
    return out

def emit(fn, **kw):
    saved = {k: getattr(P, k) for k in kw}
    for k, v in kw.items(): setattr(P, k, v)
    open(fn, "w").write(build())
    for k, v in saved.items(): setattr(P, k, v)

if __name__ == "__main__":
    B = "bench/"
    emit(B+"v47.s")
    emit("cdna_kernels/" + NAME + ".s")
```

```python
import sys, struct, math
from asmlib import Asm, check

NAME = "gated_mix__grouped_kv_mqa__grouped_kv_mqa__prompt"
KVIMG = 163840
WS_KMAX = 0x50000
WS_GATE = 0x51000
WS_FLAG = 0x58000
WS_GO = 0x5c000
WS_O = 0x60000
WS_WF = WS_O + 32*8*20480
WS_SIZE = WS_WF + 64*25600
WS_TIME = 0x780000
f2u = lambda x: struct.unpack("<I", struct.pack("<f", x))[0]
CSCALE = f2u(math.log2(math.e)/math.sqrt(20.0))
LOG2E = f2u(math.log2(math.e))

def r(b, n): return f"v[{b}:{b+n-1}]"

XB = 0
SB = 81920
SLOT = [SB, SB+20480, SB+40960, SB+61440]
WKB = SLOT[2]
GB = WKB + 25600
YB = SLOT[2]
RB = 153600
KMX = SLOT[2] + 32768
S = [16, 48]
O = [80, 96]
NEGM = 112
Q16 = [144, 148]
Q4 = 152
IDX = 154
K16 = [156, 160]
K4 = 164
V = [[172, 176], [180, 184]]
AK, AV = 188, 189
WPF = 192

class P:
    sched = [2,'Sp','W',3,'T',8,'S0',2,'LV',3,'S1',2,'LK',2,'M0',4,'S2',3,'M1',3]
    prio_switch = 12
    sync_iter = 3
    sync2 = 7
    pf_a = 6
    pf_b = 5
    timing = False
    spin_max = 60000
    lead = 4
    probe_sleep = 2
    probe = [(0,4),(2,4),(0,0),(0,1),(0,2),(0,3)]
    fast = 1
    cpm = 1
    cplim = 64
    o2 = True
    pi = 5
    mo = [0,4,1,5,2,6,3,7]
    tp = [3,3,3,3,3,1,0,0]
    xr = True
    ocopy = True
    diag = None
    trper = 2
    wpre = 0
    restore = False
    codepf = True
    o_sc = ''
    wbl2 = False
    p1first = True
    mprio = True
    wspread = True
    pretouch = 1
    fast_sc = ''
    out_sc = ''
    rot = 1
    pc = 7
    kve = [3, 2]
    fc = 1
    early1 = True
    chk = 1
    s1u = 0
    bprio = 1
    bprio2 = 3
    lastfirst = True
    chkcnt = 0
    atom_first = False
    psleep = 2

def step(a, j, sched, last=False, extra=None):
    X = S[j % 2]; Y = S[(j+1) % 2]
    Vc = V[j % 2]; Vp = V[(j+1) % 2]
    jn = (j + 1) % 4
    k4 = K4 + (2 if jn >= 2 else 0)
    abid = jn & 1
    def e(i): a(f"v_exp_f32 v{X+i}, v{X+i}")
    ops = {
      'W': lambda: a("s_waitcnt lgkmcnt(0)"),
      'Sp': lambda: a(f"v_smfmac_f32_32x32x32_bf16 {r(O[1],16)}, {r(Vp[1],4)}, {r(Y+24,8)}, v{IDX}"),
      'T': lambda: a(f"v_mfma_f32_32x32x4_2b_bf16 {r(Y,32)}, {r(k4,2)}, {r(Q4,2)}, {r(NEGM,32)} cbsz:1 abid:{abid}"),
      'S0': lambda: a(f"v_smfmac_f32_32x32x32_bf16 {r(O[0],16)}, {r(Vc[0],4)}, {r(X,8)}, v{IDX}"),
      'S1': lambda: a(f"v_smfmac_f32_32x32x32_bf16 {r(O[0],16)}, {r(Vc[1],4)}, {r(X+8,8)}, v{IDX}"),
      'S2': lambda: a(f"v_smfmac_f32_32x32x32_bf16 {r(O[1],16)}, {r(Vc[0],4)}, {r(X+16,8)}, v{IDX}"),
      'M0': lambda: a(f"v_mfma_f32_32x32x16_bf16 {r(Y,16)}, {r(K16[(j+1)%2],4)}, {r(Q16[0],4)}, {r(Y,16)}"),
      'M1': lambda: a(f"v_mfma_f32_32x32x16_bf16 {r(Y+16,16)}, {r(K16[(j+1)%2],4)}, {r(Q16[1],4)}, {r(Y+16,16)}"),
    }
    def LV():
        voff = 5120 + (j+1)*1280 if j < 3 else 10240 + 5120
        a("s_mov_b64 exec, s[30:31]")
        a(f"ds_read_b128 {r(Vp[0],4)}, v{AV} offset:{voff}")
        a(f"ds_read_b128 {r(Vp[1],4)}, v{AV} offset:{voff+640}")
        a("s_mov_b64 exec, -1")
    def LK():
        koff = (j+2)*1024 if j < 2 else 10240 + (j-2)*1024
        a(f"ds_read_b128 {r(K16[j%2],4)}, v{AK} offset:{koff}")
        if j == 2:
            a(f"ds_read_b128 {r(K4,4)}, v{AK} offset:{10240+4096}")
        if j == 3:
            a(f"v_add_u32 v{AK}, s29, v{AK}")
            a(f"v_add_u32 v{AV}, s29, v{AV}")
    ops['LV'] = LV; ops['LK'] = LK
    ei = 0
    for tok in sched:
        if isinstance(tok, int):
            for _ in range(tok):
                e(ei); ei += 1
                if extra and ei in extra: extra[ei]()
        elif last and ((j == 3 and tok in ('T','M0','M1','LV','LK')) or (j == 2 and tok == 'LK')): pass
        else: ops[tok]()
    assert ei == 32

NST = 12
MODES = {
 'all': [0,2,'c0','c7','c9',6,5,7,8,9,10,11],
 'post': [0,7,8,'e1',9,10,'e3','e4','e5','e6',11,'zz'],
 'pre': [0,2,'x0','c0','c1','c2','c4','c6','c7','c9',6,7],
 'it': [0,'c1','c2','c3','c4','c5','c6','w7','c7','c8','c9',7],
 'i8': [0,'c7','c8','y0','y1','y2','y3','y4','c9',6,5,7],
 'ev': [0,7,'v0','v1','v2','v3','v4','v5','v6',8,9,11],
 'bq': [0,6,'b0','b1','q1','q4','q7','b2','b3','b4',7,8],
}
def stamp(a, i):
    if P.timing and i in MODES[P.timing]:
        k = MODES[P.timing].index(i)
        a(f"s_memtime s[{76+2*k}:{77+2*k}]")

def srd(a, d, lo, size):
    a(f"s_mov_b32 s{d}, s{lo}\ns_mov_b32 s{d+1}, s{lo+1}\ns_mov_b32 s{d+2}, {size}\ns_mov_b32 s{d+3}, 0x00020000")

def wo_load(a, n, dst):
    if n % 4 == 0: a(f"s_add_u32 s33, s27, {(n//4)*4096}")
    a(f"buffer_load_dwordx4 {r(dst,4)}, v1, s[8:11], s33 offen offset:{(n%4)*1024} sc1")

def kvdma(a, voff):
    a(f"""
s_mov_b32 m0, s33
s_add_u32 s34, s33, s3
s_cmp_ge_u32 s34, {KVIMG}
s_cselect_b32 s28, {KVIMG}, 0
s_sub_u32 s34, s34, s28
s_add_u32 s34, s34, s26
buffer_load_dwordx4 v{voff}, s[8:11], s34 offen sc1 lds
""")

def gen():
    a = Asm()
    name = NAME + "_kernel"
    a(f""".globl {name}
.p2align 8
.type {name},@function
{name}:
s_cmp_ge_u32 s2, 256
s_cbranch_scc1 L_end
s_load_dwordx16 s[36:51], s[0:1], 0
s_load_dwordx8 s[52:59], s[0:1], 64
s_load_dwordx4 s[60:63], s[0:1], 96
""")
    if P.timing or P.diag: a("s_memrealtime s[100:101]")
    stamp(a, 0)
    CODEPF = ""
    if P.cpm == 1:
        a(f"""
s_getpc_b64 s[6:7]
L_pc:
s_bfe_u32 s33, s2, 0x20003
s_lshl_b32 s33, s33, 13
v_lshl_add_u32 v246, v0, 4, s33
v_min_u32 v246, L_codeend-L_pc-16, v246
v_mov_b32 v247, s7
v_add_co_u32 v246, vcc, s6, v246
s_cmp_lt_u32 s2, {P.cplim}
s_cbranch_scc0 L_ncp
v_addc_co_u32 v247, vcc, 0, v247, vcc
global_load_dwordx4 v[248:251], v[246:247], off
L_ncp:
""")
    a(f"""
v_lshrrev_b32 v1, 6, v0
v_and_b32 v2, 63, v0
s_and_b32 s21, s2, 7
v_readfirstlane_b32 s20, v1
s_lshr_b32 s25, s2, 6
s_lshl_b32 s22, s25, 3
s_add_u32 s21, s21, s22
s_bfe_u32 s22, s2, 0x30003
s_lshr_b32 s23, s22, 2
s_and_b32 s24, s22, 3
{'s_mov_b32 s25, s22' if P.xr else 's_add_u32 s25, s25, s22'}
s_mul_i32 s26, s25, 52
s_lshr_b32 s26, s26, 8
s_mul_i32 s26, s26, 5
s_sub_u32 s25, s25, s26
v_lshlrev_b32 v1, 4, v2
s_lshl_b32 s26, s20, 2
v_lshrrev_b32 v11, 4, v2
v_add_u32 v11, s26, v11
v_xor_b32 v12, v11, v2
v_and_b32 v12, 15, v12
v_mul_u32_u24 v11, 1280, v11
v_lshl_add_u32 v10, v12, 4, v11
s_lshl_b32 s26, s20, 10
s_mul_i32 s5, s25, 5120
s_lshl_b32 s3, s25, 8
s_add_u32 s33, s3, s26
s_sub_u32 s33, s33, 1024
v_add_u32 v14, s33, v1
v_subrev_u32 v15, 1280, v14
v_min_u32 v14, v14, v15
s_and_b32 s32, s24, 1
s_mul_i32 s27, s21, {64*1280}
s_mul_i32 s33, s32, {32*1280}
s_add_u32 s27, s27, s33
s_lshl_b32 s29, s32, 13
s_add_u32 s29, s29, s26
s_mov_b32 s14, {2048*1280}
s_mov_b32 s15, 0x00020000
s_mov_b32 s66, 25600
s_mov_b32 s67, 0x00020000
s_mov_b32 s18, 819200
s_mov_b32 s19, 0x00020000
s_mov_b32 s70, 1280
s_mov_b32 s71, 0x00020000
v_and_b32 v3, 31, v2
v_lshrrev_b32 v4, 5, v2
{CODEPF}
s_waitcnt lgkmcnt(0)
s_mov_b32 s12, s36
s_mov_b32 s13, s37
""")
    def xload(i):
        a(f"""
s_add_u32 m0, s29, {i*16384}
s_add_u32 s33, s3, s27
buffer_load_dwordx4 v10, s[12:15], s33 offen lds
s_add_u32 s3, s3, 256
s_cmp_eq_u32 s3, 1280
s_cselect_b32 s3, 0, s3
""")
    def wkload():
        a(f"""
s_add_u32 m0, s31, {WKB}
s_add_u32 s33, s31, s5
s_cmp_ge_u32 s33, 25600
s_cselect_b32 s30, 25600, 0
s_sub_u32 s33, s33, s30
buffer_load_dwordx4 v1, s[64:67], s33 offen lds
""")
    def wk(i):
        a(f"s_add_u32 s31, s26, {i*8192}")
        wkload()
    def wq_set(a, c):
        a(f"""
s_xor_b32 s34, s{56 if c < 8 else 57}, {c}
s_add_u32 s34, s34, s53
s_cmp_ge_u32 s34, 10
s_cselect_b32 s33, 10, 0
s_sub_u32 s34, s34, s33
s_mul_i32 s34, s34, {64*1280}
s_add_u32 s34, s34, s35
""")
    def wq5(a, ldsbase, c):
        wq_set(a, c)
        for i in range(5):
            a(f"s_add_u32 m0, s28, {ldsbase + i*960}")
            a("s_nop 0")
            a(f"buffer_load_dwordx4 v5, s[16:19], s34 offen offset:{64*i} lds")
    xload(0)
    a("""
s_cmp_eq_u32 s23, 0
s_cselect_b32 s16, s38, s48
s_cselect_b32 s17, s39, s49
s_cselect_b32 s40, s40, s50
s_cselect_b32 s41, s41, s51
s_cselect_b32 s42, s42, s52
s_cselect_b32 s43, s43, s53
s_cmp_lt_u32 s24, 2
s_cselect_b32 s64, s40, s42
s_cselect_b32 s65, s41, s43
s_mov_b32 s68, s56
s_mov_b32 s69, s57
""")
    wk(0)
    a(f"""
s_cmp_ge_u32 s20, 3
s_cbranch_scc1 L_noopt
s_cmp_eq_u32 s20, 0
s_cbranch_scc1 L_opt0
s_add_u32 m0, s26, {GB-1024}
s_nop 0
buffer_load_dwordx4 v14, s[68:71], 0 offen lds
s_branch L_noopt
L_opt0:
s_movk_i32 s31, {24*1024}
""")
    wkload()
    a("L_noopt:")
    xload(1); wk(1); xload(2)
    AF = [156, 228]; YF = [196, 212]; XK = [48, 80, 112]; XA = 144; ACC = [16, 32]; TA = 192; TY = 244
    def xfrag(c, k): return (XK[c >> 1] + 16*(c & 1) if c < 6 else (48, 64, 112, 128)[c-6]) + 4*k
    CSL = [SLOT[c % 4] for c in range(10)]
    KX = 200; KW = 204; KG = 205; KI = 206; KGp = 207; KACC, GACC = 208, 212; FB = [112, 216]
    srd(a, 8, 62, 0x1000000 if P.timing else WS_SIZE)
    srd(a, 72, 60, 256)
    a(f"""
s_lshl_b32 s51, s23, 11
s_add_u32 s51, s51, {WS_GO}
s_lshl_b32 s50, s21, 2
s_add_u32 s50, s50, s24
s_lshl_b32 s50, s50, 4
s_add_u32 s50, s50, s51
s_cmp_lg_u32 s20, 4
s_cbranch_scc1 L_nsnap
s_lshl_b32 s30, s21, 9
s_add_u32 s30, s30, {WS_FLAG}
s_lshl_b32 s31, s22, 5
s_add_u32 s33, s30, s31
s_lshl_b32 s31, s22, 2
s_add_u32 s30, s30, s31
s_getreg_b32 s31, hwreg(HW_REG_XCC_ID, 0, 4)
v_mov_b32 v252, 0
v_mov_b32 v253, 0
v_mov_b32 v254, 0
v_mov_b32 v255, 0
v_mov_b32 v244, s31
s_mov_b64 exec, 3
buffer_store_dwordx4 v[252:255], v1, s[8:11], s33 offen offset:256 sc1
s_mov_b64 exec, 1
buffer_store_dword v244, v1, s[8:11], s30 offen sc1
buffer_store_dword v252, v1, s[8:11], s50 offen sc1
s_mov_b64 exec, -1
L_nsnap:
""")
    a(f"""
s_and_b32 s46, s20, 3
s_lshr_b32 s47, s20, 2
{'s_xor_b32 s47, s47, s32' if P.ocopy else ''}
""")
    def voffs(a, blk_rows, prrow, prcol):
        off = lambda p: prrow(p)*1280 + prcol(p)
        a(f"""
v_lshrrev_b32 v12, 4, v2
v_mul_u32_u24 v12, {blk_rows*1280}, v12
v_bfe_u32 v13, v2, 2, 2
v_mul_u32_u24 v13, 1280, v13
v_add_u32 v12, v12, v13
v_add_u32 v13, 1, v2
v_and_b32 v14, 1, v13
v_bfe_u32 v13, v13, 1, 1
v_mul_u32_u24 v14, {off(1)}, v14
v_mul_u32_u24 v13, {off(2)}, v13
v_add3_u32 v13, v13, v14, 64
v_add_u32 v9, v12, v13
""")
        for i in range(4):
            a(f"""
v_subrev_u32 v13, {i}, v2
v_bfe_u32 v14, v13, 1, 1
v_and_b32 v13, 3, v13
v_xor_b32 v13, v13, v14
v_lshl_add_u32 v13, v13, 4, v12
v_add_u32 v{5+i}, {off(i)}, v13
""")
    def traddr(a, dst, base_v, prv):
        a(f"""
v_bfe_u32 v12, v2, 2, 2
v_lshl_add_u32 v{base_v}, v12, 6, v{base_v}
v_and_b32 v12, 1, v2
v_lshlrev_b32 v12, 4, v12
v_bfe_u32 v14, v2, 1, 1
v_lshl_add_u32 v12, v14, 3, v12
v_bfe_u32 v14, v2, 4, 1
v_mad_u32_u24 v12, v14, 40, v12
v_lshrrev_b32 v15, 4, v12
v_and_b32 v12, 8, v12
v_cmp_eq_u32 vcc, 4, v15
v_lshrrev_b32 v14, 1, v15
v_xor_b32 v15, v14, v15
v_min_u32 v15, 3, v15
v_add_u32 v12, v{base_v}, v12
v_and_b32 v14, 1, v2
v_cmp_eq_u32 s[48:49], 1, v14
v_lshl_add_u32 v{base_v}, v14, 3, v{base_v}
""")
        for rho in range(2):
            prv(rho)
            a(f"""
v_add_u32 v14, v15, v13
v_and_b32 v14, 3, v14
v_lshl_add_u32 v{dst+rho}, v14, 4, v12
v_cndmask_b32 v14, v13, 4, vcc
v_lshl_add_u32 v{dst+rho}, v14, 10, v{dst+rho}
v_add_u32 v14, 3, v13
v_and_b32 v14, 3, v14
v_lshl_add_u32 v{dst+2+rho}, v14, 4, v{base_v}
v_cndmask_b32 v14, v13, 4, s[48:49]
v_lshl_add_u32 v{dst+2+rho}, v14, 10, v{dst+2+rho}
""")
    def xaddr(a, dst):
        a(f"""
s_lshl_b32 s33, s47, 13
v_and_b32 v14, 15, v3
v_lshlrev_b32 v15, 8, v3
v_add_u32 v15, s33, v15
v_xor_b32 v11, v4, v14
v_lshl_add_u32 v{dst}, v11, 4, v15
""")
        for s in range(1, 8): a(f"v_xor_b32 v{dst+s}, {s<<5}, v{dst}")
    def setup_att(a):
        a(f"""
v_mov_b32 v{AK}, v1
v_mov_b32 v{IDX}, 0xdddddddd
v_mul_u32_u24 v{AV}, 320, v4
v_lshl_add_u32 v{AV}, v3, 4, v{AV}
v_and_b32 v11, 27, v3
v_cmp_eq_u32 vcc, 24, v11
v_mov_b32 v13, 0x3f803f80
v_lshlrev_b32 v191, 2, v3
v_cndmask_b32 v13, 0, v13, vcc
""")
        for b in (V[0][0], V[0][1], V[1][0], V[1][1]):
            for i in range(4): a(f"v_mov_b32 v{b+i}, v13")
    a("""
v_lshrrev_b32 v12, 2, v2
v_mul_u32_u24 v12, 1280, v12
v_and_b32 v13, 3, v2
v_lshl_add_u32 v5, v13, 4, v12
""")
    a(f"""
s_mul_i32 s33, s46, {16*1280}
s_mul_i32 s34, s24, 320
s_add_u32 s35, s33, s34
s_lshl_b32 s53, s25, 1
s_lshr_b32 s56, s2, 6
{'' if P.xr else 's_mov_b32 s56, 0'}
s_and_b32 s57, s56, 1
s_mul_i32 s28, s46, 5120
""")
    xaddr(a, XA)
    a(f"s_lshl_b32 s33, s46, 5\ns_lshl_b32 s30, s57, 7\ns_or_b32 s33, s33, s30")
    for s in range(8): a(f"v_xor_b32 v{XA+s}, s33, v{XA+s}")
    a(f"""
v_lshlrev_b32 v11, 9, v4
v_bfe_u32 v12, v2, 2, 2
v_lshl_add_u32 v11, v12, 6, v11
v_add_u32 v11, {SB}, v11
v_and_b32 v13, 1, v2
v_lshlrev_b32 v12, 4, v13
v_bfe_u32 v14, v2, 1, 1
v_lshl_add_u32 v12, v14, 3, v12
v_bfe_u32 v14, v2, 4, 1
v_mad_u32_u24 v12, v14, 40, v12
s_mul_i32 s33, s46, 80
v_add_u32 v12, s33, v12
v_lshrrev_b32 v15, 6, v12
v_and_b32 v12, 63, v12
v_lshl_add_u32 v12, v15, 10, v12
v_add_u32 v12, v11, v12
v_xor_b32 v14, v13, v14
v_lshl_add_u32 v11, v14, 18, v11
v_bfe_u32 v13, v2, 1, 1
v_mul_u32_u24 v13, 40, v13
v_add3_u32 v13, v13, 32, s33
v_lshrrev_b32 v15, 6, v13
v_and_b32 v13, 63, v13
v_lshl_add_u32 v13, v15, 10, v13
v_add_u32 v153, v11, v13
""")
    for k in range(4):
        a(f"s_xor_b32 s33, s46, {k}\ns_mul_i32 s33, s33, 5120\nv_add_u32 v{TA+k}, s33, v12")
    a(f"""
v_and_b32 v{KI}, 15, v2
v_lshrrev_b32 v{KGp}, 4, v2
s_lshl_b32 s32, s32, 1
s_and_b32 s33, s20, 1
s_add_u32 s32, s32, s33
s_lshl_b32 s33, s32, 12
v_lshlrev_b32 v11, 8, v{KI}
v_add_u32 v11, s33, v11
v_xor_b32 v12, v{KGp}, v{KI}
v_lshl_add_u32 v{KX}, v12, 4, v11
v_xor_b32 v{KX+1}, 64, v{KX}
v_xor_b32 v{KX+2}, 128, v{KX}
v_xor_b32 v{KX+3}, 192, v{KX}
v_lshrrev_b32 v11, 2, v{KI}
v_lshl_add_u32 v11, v{KGp}, 3, v11
v_mul_u32_u24 v11, 40, v11
v_and_b32 v12, 3, v{KI}
v_lshlrev_b32 v12, 3, v12
s_bitcmp1_b32 s20, 1
s_cbranch_scc0 L_kvc0
v_mov_b32 v12, 32
L_kvc0:
s_mov_b32 s33, {WKB}
v_add3_u32 v{KW}, v11, v12, s33
v_lshlrev_b32 v{KG}, 4, v{KGp}
v_add_u32 v{KG}, {GB}, v{KG}
s_lshl_b32 s32, s32, 4
s_lshl_b32 s33, s21, 6
s_add_u32 s32, s32, s33
""")
    for i in range(8): a(f"v_mov_b32 v{KACC+i}, 0")
    stamp(a, 'p0')
    a("s_barrier")
    wk(2); xload(3); xload(4)
    a(f"""
s_xor_b32 s29, s29, 8192
s_bitcmp1_b32 s24, 0
s_cselect_b32 s33, {(-32*1280) & 0xffffffff}, 0
s_cselect_b32 s30, 0, {32*1280}
s_add_u32 s27, s27, s33
s_add_u32 s27, s27, s30
""")
    for i in range(20): a(f"v_mov_b32 v{16+i}, 0")
    setup_att(a)
    a("s_barrier")
    for i in range(5): xload(i)
    a(f"""
s_lshr_b32 s30, s32, 7
s_mul_i32 s30, s30, 10240
s_mul_i32 s26, s23, {KVIMG}
s_add_u32 s30, s30, s26
s_lshr_b32 s3, s2, 6
s_lshl_b32 s3, s3, 2
s_add_u32 s3, s3, s24
s_mul_i32 s3, s3, 11
s_lshr_b32 s3, s3, 4
s_mul_i32 s3, s3, 10240
s_lshl_b32 s27, s22, 3
s_add_u32 s27, s27, s20
s_mul_i32 s27, s27, 25600
s_add_u32 s27, s27, {WS_WF}
s_movk_i32 s29, 10240
""")
    stamp(a, 1)
    a(f"s_waitcnt vmcnt({10 if P.wpre else 5})")
    a("s_barrier")
    stamp(a, 2)
    a("s_cmp_lt_u32 s20, 4\ns_cbranch_scc1 L_oload\ns_setprio 1")
    a("""
s_cmp_lg_u32 s20, 4
s_cbranch_scc1 L_narm
s_lshl_b32 s31, s23, 7
v_mov_b32 v252, 1
s_mov_b64 exec, 1
buffer_atomic_add v252, v1, s[72:75], s31 offen
s_mov_b64 exec, -1
L_narm:
""")
    def kv_chain(kind):
        def rd(g):
            b = FB[g % 2]
            for u in range(2):
                ks = 2*g + u
                if ks == 16:
                    for s in range(4): a(f"v_add_u32 v{KX+s}, 0x10000, v{KX+s}")
                a(f"ds_read_b128 {r(b+4*u,4)}, v{KX+(ks&3)} offset:{((ks>>2)&3)*16384}")
                a(f"ds_read_b64_tr_b16 {r(b+8+4*u,2)}, v{KW} offset:{ks*1280}")
                a(f"ds_read_b64_tr_b16 {r(b+10+4*u,2)}, v{KW} offset:{ks*1280+160}")
                if kind == 'G': a(f"ds_read_b128 {r(b+16+4*u,4)}, v{KG} offset:{ks*64}")
        n = 8 if kind == 'G' else 6
        rd(0)
        for g in range(10):
            if g < 9:
                if kind == 'G': a(f"s_waitcnt lgkmcnt(7)")
                rd(g+1)
                a(f"s_waitcnt lgkmcnt({n})")
            else: a("s_waitcnt lgkmcnt(0)")
            b = FB[g % 2]
            for u in range(2):
                if kind == 'K':
                    a(f"v_mfma_f32_16x16x32_bf16 {r(KACC,4)}, {r(b+8+4*u,4)}, {r(b+4*u,4)}, {r(KACC,4)}")
                else:
                    a(f"v_mfma_f32_16x16x32_bf16 {r(KACC,4)}, {r(b+4*u,4)}, {r(b+8+4*u,4)}, {r(KACC,4)}")
                    if kind == 'G': a(f"v_mfma_f32_16x16x32_bf16 {r(GACC,4)}, {r(b+4*u,4)}, {r(b+16+4*u,4)}, {r(GACC,4)}")
    a("s_cmp_ge_u32 s24, 2\ns_cbranch_scc1 L_kvV")
    kv_chain('K')
    a(f"""
s_mov_b32 s33, {CSCALE}
s_waitcnt vmcnt(1)
s_cmp_eq_u32 s20, 4
s_cbranch_scc1 L_awk
s_waitcnt vmcnt(0)
L_awk:
s_nop 4
v_mul_f32 v208, s33, v208
v_mul_f32 v209, s33, v209
v_mul_f32 v210, s33, v210
v_mul_f32 v211, s33, v211
v_cvt_pk_bf16_f32 v240, v208, v209
v_cvt_pk_bf16_f32 v241, v210, v211
v_mul_f32 v242, v208, v208
v_fmac_f32 v242, v209, v209
v_fmac_f32 v242, v210, v210
v_fmac_f32 v242, v211, v211
s_bitcmp1_b32 s20, 1
s_cbranch_scc1 L_kvK4
s_bfe_u32 s31, s32, 0x20005
s_lshl_b32 s31, s31, 10
s_add_u32 s30, s30, s31
s_and_b32 s31, s32, 31
s_lshl_b32 s31, s31, 4
s_add_u32 s30, s30, s31
v_mov_b32 v248, v240
v_mov_b32 v249, v241
v_mov_b32 v250, v240
v_mov_b32 v251, v241
v_lshrrev_b32 v243, 1, v207
v_lshlrev_b32 v243, 9, v243
v_permlane16_swap_b32 v248, v250
v_permlane16_swap_b32 v249, v251
v_lshl_add_u32 v243, v206, 4, v243
s_mov_b32 exec_lo, 0xffff
s_mov_b32 exec_hi, 0xffff
buffer_store_dwordx4 v[248:251], v243, s[8:11], s30 offen sc1
s_mov_b64 exec, -1
v_mov_b32 v244, v242
s_nop 1
v_permlane16_swap_b32 v242, v244
v_add_f32 v242, v242, v244
v_mov_b32 v244, v242
s_nop 1
v_permlane32_swap_b32 v242, v244
v_add_f32 v242, v242, v244
s_mov_b32 s30, 0
s_branch L_kvmax
L_kvK4:
s_and_b32 s31, s32, 63
s_lshl_b32 s31, s31, 4
s_add_u32 s30, s30, s31
s_bfe_u32 s31, s32, 0x10006
s_lshl_b32 s31, s31, 3
s_add_u32 s30, s30, s31
s_add_u32 s30, s30, 4096
v_lshlrev_b32 v243, 4, v206
s_mov_b64 exec, 0xffff
buffer_store_dwordx2 v[240:241], v243, s[8:11], s30 offen sc1
s_mov_b64 exec, -1
s_movk_i32 s30, 512
L_kvmax:
s_nop 1
v_max_f32_dpp v242, v242, v242 row_ror:8 row_mask:0xf bank_mask:0xf
s_nop 1
v_max_f32_dpp v242, v242, v242 row_ror:4 row_mask:0xf bank_mask:0xf
s_nop 1
v_max_f32_dpp v242, v242, v242 row_ror:2 row_mask:0xf bank_mask:0xf
s_nop 1
v_max_f32_dpp v242, v242, v242 row_ror:1 row_mask:0xf bank_mask:0xf
s_lshl_b32 s31, s23, 10
s_add_u32 s31, s31, s30
s_lshr_b32 s30, s32, 4
s_lshl_b32 s30, s30, 2
s_add_u32 s31, s31, s30
s_add_u32 s31, s31, {WS_KMAX}
v_mov_b32 v243, 0
s_mov_b64 exec, 1
buffer_store_dword v242, v243, s[8:11], s31 offen sc1
s_branch L_kvend
L_kvV:
s_bitcmp1_b32 s20, 1
s_cbranch_scc1 L_kvG
""")
    kv_chain('V')
    a("s_branch L_kvV2\nL_kvG:")
    kv_chain('G')
    a(f"""
s_mov_b32 s33, {LOG2E}
s_cmp_eq_u32 s23, 0
s_cselect_b32 s31, 0x80000000, 0
s_xor_b32 s33, s33, s31
s_lshl_b32 s31, s23, 13
s_lshl_b32 s4, s32, 2
s_add_u32 s31, s31, s4
s_add_u32 s31, s31, {WS_GATE}
""")
    for i in range(4): a(f"v_mul_f32 v{212+i}, s33, v{212+i}")
    for i in range(4): a(f"v_exp_f32 v{212+i}, v{212+i}")
    for i in range(4): a(f"v_add_f32 v{212+i}, 1.0, v{212+i}")
    for i in range(4): a(f"v_rcp_f32 v{212+i}, v{212+i}")
    a(f"""
v_lshlrev_b32 v243, 4, v207
s_waitcnt vmcnt(0)
s_mov_b32 exec_lo, 0x00010001
s_mov_b32 exec_hi, 0x00010001
buffer_store_dwordx4 v[212:215], v243, s[8:11], s31 offen sc1
s_mov_b64 exec, -1
s_branch L_kvV3
L_kvV2:
s_waitcnt vmcnt(1)
s_cmp_eq_u32 s20, 4
s_cbranch_scc1 L_awv
s_waitcnt vmcnt(0)
L_awv:
L_kvV3:
s_bfe_u32 s31, s32, 0x30004
s_mul_i32 s31, s31, 640
s_add_u32 s30, s30, s31
s_add_u32 s30, s30, 5120
v_lshrrev_b32 v243, 1, v207
v_mul_u32_u24 v243, 320, v243
v_lshl_add_u32 v243, v206, 4, v243
s_nop 1
v_cvt_pk_bf16_f32 v248, v208, v209
v_cvt_pk_bf16_f32 v249, v210, v211
v_cvt_pk_bf16_f32 v250, v208, v209
v_cvt_pk_bf16_f32 v251, v210, v211
s_bitcmp1_b32 s20, 1
s_cselect_b32 s31, 256, 0
s_cselect_b32 s33, 15, 0xffff
v_permlane16_swap_b32 v248, v250
v_permlane16_swap_b32 v249, v251
s_add_u32 s30, s30, s31
s_mov_b32 exec_lo, s33
s_mov_b32 exec_hi, s33
buffer_store_dwordx4 v[248:251], v243, s[8:11], s30 offen sc1
L_kvend:
s_mov_b64 exec, -1
""")
    def xread(c):
        for k in range(4):
            a(f"ds_read_b128 {r(xfrag(c,k),4)}, v{XA+4*(c&1)+k} offset:{((c>>1)&2)*16384}")
    def xcopy():
        def xadd(expr):
            a(expr)
            for s in range(8): a(f"v_add_u32 v{XA+s}, s33, v{XA+s}")
        xadd("s_lshr_b32 s30, s56, 1\ns_lshl_b32 s30, s30, 14\ns_mov_b32 s33, s30")
        xread(0); xread(1); xread(4)
        a("s_waitcnt lgkmcnt(8)")
        xread(5)
        xadd("s_lshl_b32 s33, s30, 1\ns_sub_u32 s33, 16384, s33")
        a("s_waitcnt lgkmcnt(4)")
        xread(2); xread(3)
        a("s_waitcnt lgkmcnt(4)")
        for i in range(4): a(f"s_xor_b32 s33, s46, {i}\ns_mul_i32 s33, s33, 5120\nv_add_u32 v{TY+i}, s33, v153")
    a("s_branch L_q0\nL_oload:")
    if not P.wpre:
        wq5(a, SLOT[0], 0)
        if P.early1: wq5(a, SLOT[1], 1)
    if P.ocopy: xcopy()
    a(f"s_waitcnt vmcnt({5 if (P.early1 or P.wpre) else 0})\nL_q0:")
    stamp(a, 'x0')
    def toff(c): return CSL[c] - SB if CSL[c] >= SB else CSL[c]
    def trread(c):
        o = toff(c)
        L = []
        for k in range(4):
            L.append(f"ds_read_b64_tr_b16 {r(AF[c%2]+4*k,2)}, v{TA+k} offset:{o}")
            L.append(f"ds_read_b64_tr_b16 {r(AF[c%2]+4*k+2,2)}, v{TA+k} offset:{o + 256}")
            L.append(f"ds_read_b64_tr_b16 {r(YF[c%2]+4*k,2)}, v{TY+k} offset:{o}")
            L.append(f"ds_read_b64_tr_b16 {r(YF[c%2]+4*k+2,2)}, v{TY+k} offset:{o + 256}")
        return L
    def xread(c):
        for k in range(4):
            a(f"ds_read_b128 {r(xfrag(c,k),4)}, v{XA+4*(c&1)+k} offset:{((c>>1)&2)*16384}")
    def mm(c, k):
        if c < 9: k = P.mo[k]
        if k < 4: a(f"v_mfma_f32_32x32x16_bf16 {r(ACC[0],16)}, {r(AF[c%2]+4*k,4)}, {r(xfrag(c,k),4)}, {r(ACC[0],16)}")
        else: a(f"v_mfma_f32_16x16x32_bf16 {r(ACC[1],4)}, {r(YF[c%2]+4*(k-4),4)}, {r(xfrag(c,k-4),4)}, {r(ACC[1],4)}")
    a("s_cmp_lt_u32 s20, 4\ns_cselect_b64 vcc, -1, 0\nv_mov_b32 v155, 0")
    PC = P.pc; KVE = P.kve; NKE = sum(KVE)
    def later(c): return 0 if c <= PC else 1 + sum(KVE[:c-PC])
    def pollissue():
        a("buffer_load_dword v254, v1, s[8:11], s51 offen sc1\nbuffer_load_dword v255, v1, s[8:11], s51 offen offset:1024 sc1")
    WN = {1: 5, 2: 5, 3: 5, 4: 5, 5: 5, 6: 5, 7: 5, 8: 0, 9: 0}
    for c in range(10):
        own = "s_cbranch_vccnz" if c % 2 == 0 else "s_cbranch_vccz"
        if c > 0:
            a("s_waitcnt lgkmcnt(0)")
            if c == 9: stamp(a, 'y3')
            if c == 1 and P.fc == 2: a("s_waitcnt vmcnt(10)")
            elif c == 2 and P.fc == 2: a("s_waitcnt vmcnt(5)")
            elif c == 1 and P.o2: a("s_waitcnt vmcnt(10)\ns_cbranch_vccnz L_qw1\ns_waitcnt vmcnt(0)\nL_qw1:")
            elif c == 2 and P.o2: a("s_cbranch_vccz L_qw2\ns_waitcnt vmcnt(5)\nL_qw2:")
            elif c == 1: a("s_waitcnt vmcnt(5)")
            elif c == 2: a(f"{own} L_qw{c}\ns_waitcnt vmcnt(6)\ns_cmp_eq_u32 s20, 4\ns_cbranch_scc1 L_qw{c}\ns_waitcnt vmcnt(5)\nL_qw{c}:")
            else: a(f"{own} L_qw{c}\ns_waitcnt vmcnt({WN[c] + later(c)})\nL_qw{c}:")
        if c == PC: stamp(a, 'w7')
        if c == 9: stamp(a, 'y4')
        if c == PC:
            a(f"""
s_cmp_lg_u32 s20, 4
s_cbranch_scc1 L_pdone
s_mov_b32 s30, 0
s_waitcnt vmcnt({5 if P.pi == 5 else 0})
L_poll:
v_readfirstlane_b32 s33, v253
v_and_b32 v254, v254, v255
v_cmp_ne_u32 s[4:5], 1, v254
s_add_u32 s30, s30, 1
s_cmp_lt_u32 s33, 128
s_cselect_b32 s33, 1, 0
s_or_b32 s4, s4, s33
s_cmp_eq_u64 s[4:5], 0
s_cbranch_scc1 L_pdone
s_cmp_ge_u32 s30, {P.spin_max}
s_cbranch_scc1 L_pdone
s_sleep {P.psleep}
s_cmp_eq_u32 s33, 0
s_cbranch_scc1 L_pnc
s_sleep 8
buffer_load_dword v253, v155, s[72:75], s31 offen sc1
s_waitcnt vmcnt(0)
L_pnc:
""")
            pollissue()
            a("s_waitcnt vmcnt(0)\ns_branch L_poll\nL_pdone:")
        a("s_barrier")
        stamp(a, f'c{c}')
        if c == P.fc:
            a(f"""
s_cmp_lg_u32 s20, 4
s_cbranch_scc1 L_nf
v_mov_b32 v190, 1
s_mov_b64 exec, 1
buffer_store_dword v190, v155, s[8:11], s50 offen sc1
s_mov_b64 exec, -1
L_nf:
""")
        if c == 3:
            a("s_cmp_lg_u32 s20, 4\ns_cbranch_scc1 L_npc\ns_lshl_b32 s31, s23, 7\nbuffer_load_dword v253, v155, s[72:75], s31 offen sc1\nL_npc:")
        if c == P.pi:
            a("s_cmp_lg_u32 s20, 4\ns_cbranch_scc1 L_np"); pollissue(); a("L_np:")
        if c == 0:
            if P.ocopy:
                a("s_cbranch_vccnz L_i0o")
                if not P.o2: wq5(a, CSL[2], 2)
                xcopy()
                a("s_branch L_i0e\nL_i0o:")
                if P.o2: wq5(a, CSL[2], 2)
                wq5(a, CSL[3], 3)
                a("L_i0e:")
            else:
                def xadd(expr):
                    a(expr)
                    for s in range(8): a(f"v_add_u32 v{XA+s}, s33, v{XA+s}")
                xadd("s_lshr_b32 s30, s56, 1\ns_lshl_b32 s30, s30, 14\ns_mov_b32 s33, s30")
                xread(0); xread(1); xread(4)
                a("s_cbranch_vccnz L_i0o")
                wq5(a, CSL[2], 2)
                a("s_branch L_i0e\nL_i0o:")
                if not P.early1: wq5(a, CSL[1], 1)
                a("L_i0e:\ns_waitcnt lgkmcnt(0)")
                xread(5)
                xadd("s_lshl_b32 s33, s30, 1\ns_sub_u32 s33, 16384, s33")
                xread(2); xread(3)
                a("s_cbranch_vccz L_i0f")
                wq5(a, CSL[3], 3)
                a("L_i0f:\ns_waitcnt lgkmcnt(4)")
                xread(6); xread(7)
                xadd("s_add_u32 s33, s30, 49152")
                a("s_waitcnt lgkmcnt(4)")
            for i_, l in enumerate(trread(0)):
                if i_ == 8: a('s_waitcnt lgkmcnt(6)')
                a(l)
            continue
        if c == 9: break
        TL = trread(c)
        if c == PC:
            a(f"""
s_lshl_b32 s33, s23, 10
s_add_u32 s33, s33, {WS_KMAX}
buffer_load_dwordx4 v[12:15], v1, s[8:11], s33 offen sc1
s_lshl_b32 s7, s20, 10
s_add_u32 s6, s26, s3
s_add_u32 s6, s6, s7
""")
        ld = "s_cbranch_vccz" if c % 2 == 0 else "s_cbranch_vccnz"
        for i in range(8):
            mm(c-1, i)
            lo = sum(P.tp[:i]); hi = lo + P.tp[i]
            if lo <= 15 < hi + 0 or (hi > 15 and lo < 16 and lo > 0 and False): a('s_waitcnt lgkmcnt(8)')
            for l in TL[lo:hi]: a(l)
            if i == 6 and c in (3, 4, 7, 8):
                a("s_waitcnt lgkmcnt(8)")
                xread({3: 6, 4: 7, 7: 8, 8: 9}[c])
            if i == 7 and c == 4:
                a("s_lshr_b32 s33, s56, 1\ns_lshl_b32 s33, s33, 14\ns_add_u32 s33, s33, 49152")
                for s in range(8): a(f"v_add_u32 v{XA+s}, s33, v{XA+s}")
            if c <= 6 and i < 5:
                if i == 0: wq_set(a, c+3)
                a(f"{ld} L_qd{c}_{i}\ns_add_u32 m0, s28, {CSL[c+3] + i*960}\ns_nop 0\nbuffer_load_dwordx4 v5, s[16:19], s34 offen offset:{64*i} lds")
                a(f"L_qd{c}_{i}:")
            if c in (5, 6):
                for z in range(80 + 16*(c-5) + 2*i, 80 + 16*(c-5) + 2*i + 2): a(f"v_mov_b32 v{z}, 0")
            if PC <= c < PC + len(KVE) and i < KVE[c-PC]:
                a("s_mov_b32 m0, s7\ns_add_u32 s7, s7, 8192\nbuffer_load_dwordx4 v1, s[8:11], s6 offen sc1 lds\ns_add_u32 s6, s6, 8192")
    def kmred(n):
        L = [f"s_waitcnt vmcnt({n})", "v_max3_f32 v12, v12, v13, v14", "v_max_f32 v12, v12, v15"]
        for rr in (8, 4, 2, 1): L += ["s_nop 1", f"v_max_f32_dpp v12, v12, v12 row_ror:{rr} row_mask:0xf bank_mask:0xf"]
        L += ["v_mov_b32 v13, v12", "s_nop 1", "v_permlane16_swap_b32 v12, v13", "v_max_f32 v12, v12, v13", "v_mov_b32 v13, v12", "s_nop 1",
              "v_permlane32_swap_b32 v12, v13", "v_add_f32 v12, v12, v13", "v_sqrt_f32 v12, v12", "s_nop 0", "v_mul_f32 v12, 0xbf8147ae, v12"]
        return L
    firstreads = f"""
ds_read_b128 {r(K16[0],4)}, v{AK} offset:0
ds_read_b128 {r(K16[1],4)}, v{AK} offset:1024
ds_read_b128 {r(K4,4)}, v{AK} offset:4096
s_mov_b64 exec, s[30:31]
ds_read_b128 {r(V[0][0],4)}, v{AV} offset:5120
ds_read_b128 {r(V[0][1],4)}, v{AV} offset:5760
s_mov_b64 exec, -1
"""
    R9 = trread(9)
    def mm8(extra, n):
        L = kmred(n)
        for i in range(8):
            mm(8, i)
            if extra:
                if i == 3: a("s_waitcnt lgkmcnt(6)")
                for l in R9[4*i:4*i+4]: a(l)
            if i >= 5 or not extra:
                j = (i-5) if extra else None
                for l in (L[8*j:8*j+8] if extra else L[3*i:3*i+3]): a(l)
    a("s_mov_b32 s30, 0x000fffff\ns_mov_b32 s31, 0x000fffff\ns_cbranch_vccz L_bwave\ns_setprio 2")
    mm8(True, NKE)
    a("s_waitcnt vmcnt(0) lgkmcnt(0)\ns_barrier")
    stamp(a, 6)
    a("L_tJ:")
    for k in range(4):
        mm(9, k)
        if k == 0: a(firstreads)
        elif k < 3:
            for z in range(72 + 4*(k-1), 76 + 4*(k-1)): a(f"v_mov_b32 v{z}, 0")
    XF_ = []
    for t in range(2):
        for i in range(4): XF_.append(f"v_cvt_pk_bf16_f32 v{Q16[t]+i}, v{16+8*t+2*i}, v{17+8*t+2*i}")
    for t in range(2):
        XF_.append(f"v_mul_f32 v{68+t}, v{16+8*t}, v{16+8*t}")
        for i in range(1, 8): XF_.append(f"v_fmac_f32 v{68+t}, v{16+8*t+i}, v{16+8*t+i}")
    mm(9, 4); mm(9, 5); mm(9, 6); mm(9, 7); a("s_nop 7")
    for l in XF_: a(l)
    a("v_mov_b32 v48, v68\nv_mov_b32 v49, v69")
    stamp(a, 5)
    def qfin(a):
        a(f"""
v_cvt_pk_bf16_f32 v{Q4}, v32, v33
v_cvt_pk_bf16_f32 v{Q4+1}, v34, v35
v_mul_f32 v56, v32, v32
v_fmac_f32 v56, v33, v33
v_fmac_f32 v56, v34, v34
v_fmac_f32 v56, v35, v35
s_mov_b32 exec_hi, 0
v_add_f32 v48, v48, v56
s_mov_b64 exec, -1
s_mov_b32 exec_lo, 0
v_add_f32 v49, v49, v56
s_mov_b64 exec, -1
v_mov_b32 v50, v48
v_mov_b32 v51, v49
s_nop 0
v_permlane32_swap_b32 v48, v50
v_permlane32_swap_b32 v49, v51
v_add_f32 v48, v48, v50
v_add_f32 v49, v49, v51
v_sqrt_f32 v48, v48
v_sqrt_f32 v49, v49
v_mov_b32 v51, 0xc2200000
""")
    def bound(a):
        a("""
v_mul_f32 v48, v48, v12
v_mul_f32 v49, v49, v12
v_min_f32 v50, v48, v49
v_cmp_nge_f32 vcc, v50, v51
""")
    qfin(a)
    bound(a)
    ma = (1 << P.sync_iter) | (15 << P.pf_a) | (1 << P.prio_switch) | (1 << 15)
    mb = (15 << P.pf_b) | (1 << 15)
    assert P.sync_iter < P.pf_a and P.pf_a + 3 < P.prio_switch
    a(f"""
s_mov_b32 s35, {ma}
s_mov_b32 s32, {P.pf_a}
s_cmp_lt_u32 s20, 4
s_cbranch_scc0 L_bw2
s_cmp_lg_u64 vcc, 0
s_cbranch_scc1 L_aslow
L_go:
""")
    for i in range(0, 16, 2):
        a(f"v_pk_mov_b32 {r(NEGM+i,2)}, v[48:49], v[48:49] op_sel:[0,0]")
    for i in range(0, 16, 2):
        a(f"v_pk_mov_b32 {r(NEGM+16+i,2)}, v[48:49], v[48:49] op_sel:[1,1]")
    a(f"""
s_waitcnt lgkmcnt(0)
""")
    stamp(a, 7)
    if P.diag: a("s_memrealtime s[98:99]")
    a(f"""
s_nop 0
v_mfma_f32_32x32x16_bf16 {r(S[0],16)}, {r(K16[0],4)}, {r(Q16[0],4)}, {r(NEGM,16)}
v_mfma_f32_32x32x16_bf16 {r(S[0]+16,16)}, {r(K16[0],4)}, {r(Q16[1],4)}, {r(NEGM+16,16)}
s_nop 9
v_mfma_f32_32x32x4_2b_bf16 {r(S[0],32)}, {r(K4,2)}, {r(Q4,2)}, {r(S[0],32)} cbsz:1 abid:0
s_mov_b32 s34, 0
s_cmp_lt_u32 s20, 4
s_nop 15
s_nop 1
s_cbranch_scc1 L_loop
s_setprio 1
""")
    pro = list(a.lines)
    a(".p2align 6")
    a("L_loop:")
    body = Asm()
    for j in range(4): step(body, j, P.sched)
    for e in check(body.lines + body.lines, "loop"): print(e)
    for e in check(pro + body.lines, "pro"): print(e)
    a.lines += body.lines
    a("""
s_add_u32 s34, s34, 1
s_bitcmp1_b32 s35, s34
s_cbranch_scc0 L_loop
s_cmp_lt_u32 s34, 15
s_cbranch_scc1 L_event
""")
    ep = Asm()
    stamp(ep, 'v6')
    def fragreg(n): return WPF + 4*n if n < 16 else (NEGM + 4*(n-16) if n < 24 else 168)
    for j in range(4):
        extra = None
        if j == 3: extra = {2 + 3*i: (lambda n=16+i: wo_load(ep, n, fragreg(n))) for i in range(8)}
        step(ep, j, P.sched, last=True, extra=extra)
    ep("s_nop 1")
    ep(f"v_smfmac_f32_32x32x32_bf16 {r(O[1],16)}, {r(V[1][1],4)}, {r(S[1]+24,8)}, v{IDX}")
    ep("s_setprio 0\ns_waitcnt vmcnt(8)")
    stamp(ep, 8)
    if P.diag: ep("s_memrealtime s[96:97]")
    ep(f"""
s_getreg_b32 s33, hwreg(HW_REG_XCC_ID, 0, 4)
s_nop 0
v_cmp_ne_u32 vcc, s33, v11
s_cmp_eq_u64 vcc, 0
s_cselect_b32 s25, {P.fast}, 0
s_lshl_b32 s26, s21, 3
s_add_u32 s34, s26, s22
s_mul_i32 s34, s34, 20480
s_add_u32 s26, s26, s20
s_mul_i32 s26, s26, 20480
s_add_u32 s26, s26, {WS_O}
s_mul_i32 s33, s47, 10240
s_add_u32 s34, s34, s33
s_add_u32 s34, s34, {WS_O}
s_lshl_b32 s35, s46, 10
s_add_u32 s35, s35, s34
s_lshl_b32 s28, s46, 8
s_add_u32 s28, s28, s34
s_add_u32 s28, s28, 4096
v_and_b32 v12, 15, v2
v_bfe_u32 v13, v2, 4, 1
v_mul_u32_u24 v13, 5120, v13
v_lshl_add_u32 v14, v12, 4, v13
v_lshl_add_u32 v15, v4, 8, v14
""")
    for t in range(2):
        ep(f"v_rcp_f32 v{12+t}, v{O[t]+12}")
    ep("s_nop 0")
    for t in range(2):
        ep(f"v_mul_f32 v{12+t}, v{12+t}, v10")
    for t in range(2):
        for i in range(12):
            ep(f"v_mul_f32 v{O[t]+i}, v{O[t]+i}, v{12+t}")
        for i in range(4):
            ep(f"v_cvt_pk_bf16_f32 v{172+4*t+i}, v{O[t]+2*i}, v{O[t]+2*i+1}")
        for i in range(2):
            ep(f"v_cvt_pk_bf16_f32 v{180+2*t+i}, v{O[t]+8+2*i}, v{O[t]+9+2*i}")
    ep("s_cmp_eq_u32 s25, 0\ns_cbranch_scc1 L_st1")
    for sc, tail in ((P.o_sc, "s_branch L_st2\nL_st1:"), ("sc1", "L_st2:")):
        for t in range(2):
            ep(f"buffer_store_dwordx4 {r(172+4*t,4)}, v15, s[8:11], s35 offen offset:{512*t} {sc}")
        ep(f"s_mov_b32 exec_hi, 0\nbuffer_store_dwordx4 v[180:183], v14, s[8:11], s28 offen {sc}\n{tail}")
    ep(f"""
s_mov_b64 exec, -1
s_mul_i32 s28, s20, 20480
v_add_u32 v5, s28, v1
""")
    BFR = 88; WL2 = 52
    for nt in range(4):
        ep(f"s_add_u32 s33, s22, {nt}\ns_and_b32 s33, s33, 3\ns_mul_i32 s33, s33, 5120\nv_add_u32 v{6+nt}, s33, v5\ns_add_u32 s{40+2*nt}, s26, s33\ns_add_u32 s{41+2*nt}, s{40+2*nt}, 1024")
    srd(ep, 12, 58, 2048*1280)
    ep(f"""
s_lshl_b32 s30, s21, 9
s_add_u32 s30, s30, {WS_FLAG + 256}
s_lshl_b32 s31, s22, 5
s_add_u32 s31, s31, s30
s_lshl_b32 s33, s20, 2
s_add_u32 s31, s31, s33
s_lshl_b32 s33, s20, 5
s_add_u32 s30, s30, s33
v_lshlrev_b32 v15, 2, v2
v_mov_b32 v14, 1
s_mov_b64 exec, 1
""")
    stamp(ep, 'e1')
    ep(f"""
s_cmp_eq_u32 s25, 0
s_waitcnt vmcnt(0)
s_cbranch_scc1 L_fl1
buffer_store_dword v14, v15, s[8:11], s31 offen
s_branch L_fl2
L_fl1:
buffer_store_dword v14, v15, s[8:11], s31 offen sc1
s_waitcnt vmcnt(0)
L_fl2:
""")
    if P.p1first: ep("s_barrier")
    stamp(ep, 9)
    ep(f"""
s_mov_b32 s33, 0
s_mov_b64 exec, 0xff
L_poll2:
buffer_load_dword v14, v15, s[8:11], s30 offen sc1
s_add_u32 s33, s33, 1
s_waitcnt vmcnt(0)
v_cmp_ne_u32 vcc, 1, v14
s_cmp_eq_u64 vcc, 0
s_cbranch_scc1 L_p2ok
s_cmp_ge_u32 s33, {P.spin_max}
s_cbranch_scc1 L_p2ok
s_sleep {P.probe_sleep}
s_branch L_poll2
L_p2ok:
s_mov_b64 exec, -1
""")
    def frag(s_, mt):
        return fragreg(5*s_ + mt)
    def breg(nt, s_): return (52 + 20*nt if nt < 3 else 144) + 4*s_
    stamp(ep, 10)
    AC2 = [12, 32]
    def mblock(sc):
        def bl(nt, s_):
            if s_ == 0: ep(f"buffer_load_dwordx4 {r(breg(nt,0),4)}, v1, s[8:11], s{40+2*nt} offen {sc}")
            else: ep(f"buffer_load_dwordx4 {r(breg(nt,s_),4)}, v1, s[8:11], s{41+2*nt} offen offset:{(s_-1)*1024} {sc}")
        LEAD = P.lead
        seq = [(nt, s_) for nt in range(4) for s_ in range(5)]
        for i in range(LEAD): bl(*seq[i])
        issued = LEAD
        stamp(ep, 'e3')
        for i, (nt, s_) in enumerate(seq):
            acc = AC2[nt % 2]
            if s_ == 0 and P.mprio: ep(f"s_setprio {3-nt}")
            if (nt, s_) == (1, 0) and not P.p1first: ep("s_barrier")
            ep(f"s_waitcnt vmcnt({issued - i - 1})")
            if i == 0: stamp(ep, 'e4')
            for mt in range(5):
                c = "0" if s_ == 0 else r(acc+4*mt,4)
                ep(f"v_mfma_f32_16x16x32_bf16 {r(acc+4*mt,4)}, {r(frag(s_,mt),4)}, {r(breg(nt,s_),4)}, {c}")
                if mt == 0 and issued < 20: bl(*seq[issued]); issued += 1
                if P.wbl2 and i == 19 - 0 and mt == 1: ep(f"s_cmp_lg_u32 s20, 0\ns_cbranch_scc1 L_nwb\nbuffer_wbl2 sc1\nL_nwb:")
                if nt > 0 and P.wspread and mt == 3:
                    pa = AC2[(nt-1) % 2]
                    ep(f"ds_write_b128 v{6+nt-1}, {r(pa+4*s_,4)} offset:{s_*1024}")
            if s_ == 2 and nt > 0 and not P.wspread:
                pa = AC2[(nt-1) % 2]
                for mt in range(5):
                    ep(f"ds_write_b128 v{6+nt-1}, {r(pa+4*mt,4)} offset:{mt*1024}")
    mblock('sc1')
    stamp(ep, 'e5')
    if P.restore:
        ep(f"""
s_cmp_eq_u32 s25, 0
s_cbranch_scc1 L_nrs
buffer_store_dwordx4 v[172:175], v185, s[8:11], s53 offen sc1
buffer_store_dwordx4 v[176:179], v185, s[8:11], s53 offen offset:512 sc1
s_mov_b32 exec_hi, 0
buffer_store_dwordx4 v[180:183], v184, s[8:11], s54 offen sc1
s_mov_b64 exec, -1
L_nrs:
""")
    ep("s_nop 4")
    for mt in range(5):
        ep(f"ds_write_b128 v9, {r(AC2[1]+4*mt,4)} offset:{mt*1024}")
    ep(f"""
v_and_b32 v6, 15, v2
v_lshrrev_b32 v7, 4, v2
v_mul_u32_u24 v6, 1280, v6
v_lshl_add_u32 v6, v7, 3, v6
s_mul_i32 s26, s21, {64*1280}
s_mul_i32 s27, s22, 160
s_add_u32 s26, s26, s27
s_mov_b32 s28, s20
s_waitcnt lgkmcnt(0)
s_barrier
""")
    stamp(ep, 'e6')
    ep("s_lshl_b32 s33, s20, 10\nv_add_u32 v7, s33, v1\nv_add_u32 v8, 0xa000, v7\nv_add_u32 v9, 0x14000, v7\nv_add_u32 v10, 0x1e000, v7")
    def rd(u):
        for p in range(8):
            ep(f"ds_read_b128 {r(64+32*u+4*p,4)}, v{7+p//2} offset:{(p%2)*20480 + u*8192}")
    def fin(u):
        b = 64 + 32*u
        ep(f"""
s_add_u32 s28, s20, {8*u}
s_mul_i32 s33, s28, 52
s_lshr_b32 s33, s33, 8
s_mul_i32 s34, s33, {16*1280 - 5*32}
s_lshl_b32 s35, s28, 5
s_add_u32 s34, s34, s35
s_add_u32 s34, s34, s26
""")
        for i in range(4):
            for p in range(0, 8, 2): ep(f"v_add_f32 v{b+4*p+i}, v{b+4*p+i}, v{b+4+4*p+i}")
        for i in range(4):
            ep(f"v_add_f32 v{b+i}, v{b+i}, v{b+8+i}")
            ep(f"v_add_f32 v{b+16+i}, v{b+16+i}, v{b+24+i}")
        for i in range(4): ep(f"v_add_f32 v{b+i}, v{b+i}, v{b+16+i}")
        ep(f"""
v_cvt_pk_bf16_f32 v{b+4}, v{b}, v{b+1}
v_cvt_pk_bf16_f32 v{b+5}, v{b+2}, v{b+3}
buffer_store_dwordx2 {r(b+4,2)}, v6, s[12:15], s34 offen {P.out_sc}
""")
    rd(0)
    ep("s_waitcnt lgkmcnt(7)")
    rd(1)
    ep("s_waitcnt lgkmcnt(8)")
    fin(0)
    ep("s_cmp_lt_u32 s20, 4\ns_cbranch_scc0 L_f2")
    ep("s_waitcnt lgkmcnt(0)")
    rd(2)
    fin(1)
    ep("s_waitcnt lgkmcnt(0)")
    fin(2)
    ep("s_branch L_f3\nL_f2:\ns_waitcnt lgkmcnt(0)")
    fin(1)
    ep("L_f3:")
    if P.diag:
        ex = {'all': "s_sub_u32 s90, s94, s100", 'pre': "s_sub_u32 s90, s98, s100", 'post': "s_sub_u32 s90, s94, s96", 'zero': "s_mov_b32 s90, 0"}[P.diag]
        ep(f"""
s_waitcnt vmcnt(0)
s_cmp_lg_u32 s20, 0
s_cbranch_scc1 L_end
s_memrealtime s[94:95]
s_waitcnt lgkmcnt(0)
{ex}
L_dg:
s_memrealtime s[92:93]
s_waitcnt lgkmcnt(0)
s_sub_u32 s91, s92, s94
s_cmp_lt_u32 s91, s90
s_cbranch_scc1 L_dg
""")
    if P.timing:
        ep("s_waitcnt vmcnt(0)")
        stamp(ep, 11)
        ep("s_memrealtime s[4:5]\ns_waitcnt lgkmcnt(0)")
        for i in range(NST): ep(f"v_mov_b32 v{40+i}, s{76+2*i}")
        ep(f"""
v_mov_b32 v52, s100
v_mov_b32 v53, s4
v_mov_b32 v54, 0
v_mov_b32 v55, 0
s_lshl_b32 s26, s2, 3
s_add_u32 s26, s26, s20
s_lshl_b32 s26, s26, 6
s_add_u32 s26, s26, {WS_TIME}
v_mov_b32 v9, 0
s_mov_b64 exec, 1
""")
        for i in range(4): ep(f"buffer_store_dwordx4 {r(40+4*i,4)}, v9, s[8:11], s26 offen offset:{16*i}")
    for e in check(body.lines + ["s_nop 3"] + ep.lines, "epi"): print(e)
    a.lines += ep.lines
    a("L_end:\ns_endpgm")
    x = Asm()
    x(f"""
L_event:
s_sub_u32 s33, s34, s32
s_cmp_eq_u32 s33, 0
s_cbranch_scc1 L_pf
s_cmp_eq_u32 s33, 1
s_cbranch_scc1 L_pf1
s_cmp_eq_u32 s33, 2
s_cbranch_scc1 L_pf2
s_cmp_eq_u32 s33, 3
s_cbranch_scc1 L_pf3
s_cmp_eq_u32 s34, {P.prio_switch}
s_cbranch_scc1 L_ev2
""")
    stamp(x, 'v0')
    x("s_barrier")
    stamp(x, 'v1')
    x("s_branch L_loop\nL_ev2:")
    stamp(x, 'v5')
    x("s_setprio 0\ns_branch L_loop\nL_pf:")
    stamp(x, 'v2')
    x(f"""
v_lshlrev_b32 v5, 2, v2
s_mov_b32 s33, 0
L_poll3:
buffer_load_dword v6, v5, s[72:75], 0 offen sc1
s_add_u32 s33, s33, 1
s_waitcnt vmcnt(0)
s_add_u32 s28, s22, 8
v_readlane_b32 s4, v6, 0
v_readlane_b32 s5, v6, 32
v_readlane_b32 s28, v6, s28
s_nop 3
s_min_u32 s4, s4, s5
s_lshl_b32 s28, s28, 2
s_min_u32 s4, s4, s28
s_cmp_ge_u32 s4, 128
s_cbranch_scc1 L_p3ok
s_cmp_ge_u32 s33, {P.spin_max}
s_cbranch_scc1 L_p3ok
s_sleep 8
s_branch L_poll3
L_p3ok:
""")
    stamp(x, 'v3')
    x(f"""
s_lshl_b32 s28, s21, 9
s_add_u32 s28, s28, {WS_FLAG}
v_and_b32 v5, 7, v2
v_lshlrev_b32 v5, 2, v5
buffer_load_dword v11, v5, s[8:11], s28 offen sc1
v_lshlrev_b32 v5, 2, v2
buffer_load_dword v6, v5, s[8:11], s28 offen offset:256 sc1
s_lshl_b32 s28, s23, 13
s_lshl_b32 s33, s21, 8
s_add_u32 s28, s28, s33
s_lshl_b32 s33, s47, 7
s_add_u32 s28, s28, s33
s_add_u32 s28, s28, {WS_GATE}
buffer_load_dword v10, v191, s[8:11], s28 offen sc1
s_lshl_b32 s33, s21, 3
s_add_u32 s33, s33, s22
s_mul_i32 s33, s33, 20480
s_mul_i32 s28, s20, 2560
s_add_u32 s33, s33, s28
s_add_u32 s33, s33, {WS_O}
buffer_load_dwordx4 {r(WPF,4)}, v1, s[8:11], s33 offen sc1
buffer_load_dwordx4 {r(WPF,4)}, v1, s[8:11], s33 offen offset:1024 sc1
buffer_load_dwordx4 {r(WPF,4)}, v1, s[8:11], s33 offen offset:1536 sc1
""")
    x("s_branch L_loop\nL_pf1:")
    for n in range(16, 24): wo_load(x, n, WPF + 4*(n-16))
    wo_load(x, 24, 168)
    x("s_branch L_loop\nL_pf2:")
    for n in range(8): wo_load(x, n, WPF + 4*n)
    x("s_branch L_loop\nL_pf3:")
    for n in range(8, 16): wo_load(x, n, WPF + 4*n)
    stamp(x, 'v4')
    x("s_branch L_loop")
    x(f"""
L_aslow:
s_setprio 1
s_barrier
s_branch L_slow
L_bwave:
""")
    for i, l in enumerate(R9):
        if i == 12: x('s_waitcnt lgkmcnt(6)')
        x(l)
    x(f"""
s_waitcnt vmcnt(0) lgkmcnt(0)
s_barrier
s_cmp_eq_u32 s20, 4
s_cbranch_scc1 L_rpl
s_sub_u32 s33, s20, 5
s_lshl_b32 s33, s33, 10
s_add_u32 s33, s33, {NKE*8192}
L_dma:
""")
    kvdma(x, 1)
    x(f"""
s_add_u32 s33, s33, 3072
s_cmp_lt_u32 s33, {RB}
s_cbranch_scc1 L_dma
L_rplb:
s_setprio 3
""")
    main = a
    a = x
    mm8(False, 63)
    a = main
    x(f"""
s_branch L_tJ
L_bw2:
s_cmp_eq_u32 s20, 4
s_cbranch_scc1 L_repack
s_waitcnt vmcnt(0)
L_bsync:
s_setprio {P.bprio2}
s_barrier
s_cmp_lg_u64 vcc, 0
s_cbranch_scc1 L_slow
L_nosync:
s_mov_b32 s35, {mb}
s_mov_b32 s32, {P.pf_b}
s_branch L_go
""")
    x(f"""
L_rpl:
s_cmp_lt_u32 s2, 128
s_cselect_b32 s4, s44, s54
s_cselect_b32 s5, s45, s55
s_mov_b32 s6, 819200
s_mov_b32 s7, 0x00020000
s_bfe_u32 s33, s2, 0x20005
s_mul_i32 s33, s33, 160
s_and_b32 s34, s2, 3
s_mul_i32 s34, s34, 40
s_add_u32 s33, s33, s34
s_mul_i32 s33, s33, 1280
s_bfe_u32 s34, s2, 0x30002
s_mul_i32 s34, s34, 160
s_add_u32 s33, s33, s34
""")
    for i in range(7):
        x(f"v_add_u32 v5, {64*i}, v2")
        x(f"v_mul_u32_u24 v6, 52429, v5")
        x(f"v_lshrrev_b32 v6, 19, v6")
        x(f"v_mul_u32_u24 v6, 1120, v6")
        x(f"v_lshl_add_u32 v6, v5, 4, v6")
        x(f"s_mov_b32 m0, {RB + i*1024}")
        x("s_nop 0")
        x(f"buffer_load_dwordx4 v6, s[4:7], s33 offen lds")
    x(f"""
s_branch L_rplb
L_repack:
v_and_b32 v6, 15, v2
v_lshrrev_b32 v7, 4, v2
v_and_b32 v8, 3, v6
v_lshlrev_b32 v8, 3, v8
v_lshrrev_b32 v9, 2, v6
v_mul_u32_u24 v9, 160, v9
s_mov_b32 s33, {RB}
v_add3_u32 v8, v8, v9, s33
v_lshrrev_b32 v9, 1, v7
v_mul_u32_u24 v9, 3200, v9
v_and_b32 v11, 1, v7
v_mul_u32_u24 v11, 640, v11
v_add3_u32 v9, v9, v11, v8
v_lshl_add_u32 v11, v7, 5, v8
v_lshlrev_b32 v13, 4, v6
v_lshl_add_u32 v13, v7, 10, v13
s_waitcnt vmcnt(0) lgkmcnt(0)
""")
    RF = 224
    for mt in range(5):
        x(f"ds_read_b64_tr_b16 {r(RF+4*mt,2)}, v9 offset:{mt*32}")
        x(f"ds_read_b64_tr_b16 {r(RF+2+4*mt,2)}, v9 offset:{mt*32+1280}")
    x(f"""
ds_read_b64_tr_b16 {r(RF+20,2)}, v11 offset:2560
ds_read_b64_tr_b16 {r(RF+22,2)}, v11 offset:5760
ds_read_b64_tr_b16 {r(RF+24,2)}, v8 offset:{2560+128}
ds_read_b64_tr_b16 {r(RF+26,2)}, v8 offset:{5760+128}
s_bfe_u32 s4, s2, 0x30002
s_lshl_b32 s5, s4, 3
s_lshr_b32 s6, s2, 5
s_add_u32 s5, s5, s6
s_mul_i32 s5, s5, 25600
s_add_u32 s5, s5, {WS_WF}
s_and_b32 s6, s2, 3
s_mul_i32 s7, s6, 5120
s_add_u32 s7, s7, s5
s_lshl_b32 s6, s6, 8
s_add_u32 s5, s5, s6
s_add_u32 s5, s5, 20480
s_add_u32 s6, s7, 4096
s_waitcnt lgkmcnt(0)
""")
    for mt in range(4):
        x(f"buffer_store_dwordx4 {r(RF+4*mt,4)}, v1, s[8:11], s7 offen offset:{mt*1024} sc1")
    x(f"""
buffer_store_dwordx4 {r(RF+16,4)}, v1, s[8:11], s6 offen sc1
buffer_store_dwordx4 {r(RF+20,4)}, v13, s[8:11], s5 offen sc1
s_add_u32 s5, s5, 4096
s_mov_b64 exec, 0xffff
buffer_store_dwordx4 {r(RF+24,4)}, v13, s[8:11], s5 offen sc1
s_mov_b64 exec, -1
s_mov_b32 s33, {RB}
L_dma4:
""")
    kvdma(x, 1)
    x(f"""
s_add_u32 s33, s33, 1024
s_cmp_lt_u32 s33, {KVIMG}
s_cbranch_scc1 L_dma4
""")
    x(f"""
s_lshl_b32 s4, s4, 2
s_add_u32 s4, s4, 32
v_mov_b32 v5, 1
v_mov_b32 v6, 0
s_waitcnt vmcnt(0)
s_mov_b64 exec, 1
buffer_atomic_add v5, v6, s[72:75], s4 offen
s_mov_b64 exec, -1
s_branch L_bsync
""")
    for e in check(x.lines, "x"): print(e)
    a.lines += x.lines
    sl_ = Asm()
    sl_(f"""
L_slow:
v_mov_b32 v48, 0xff800000
v_mov_b32 v49, 0xff800000
v_mov_b32 v52, v{AK}
s_mov_b32 s34, 0
L_sl_loop:
ds_read_b128 {r(K4,4)}, v52 offset:4096
""")
    for j in range(4):
        sl_(f"ds_read_b128 {r(K16[0],4)}, v52 offset:{j*1024}")
        sl_("s_waitcnt lgkmcnt(0)")
        sl_(f"v_mfma_f32_32x32x4_2b_bf16 v[16:47], {r(K4+(2 if j>=2 else 0),2)}, {r(Q4,2)}, 0 cbsz:1 abid:{j&1}")
        sl_("s_nop 15\ns_nop 1")
        sl_(f"v_mfma_f32_32x32x16_bf16 v[16:31], {r(K16[0],4)}, {r(Q16[0],4)}, v[16:31]")
        sl_(f"v_mfma_f32_32x32x16_bf16 v[32:47], {r(K16[0],4)}, {r(Q16[1],4)}, v[32:47]")
        sl_("s_nop 11")
        for t in range(2):
            for i in range(0, 16, 2):
                sl_(f"v_max3_f32 v{48+t}, v{16+16*t+i}, v{17+16*t+i}, v{48+t}")
    sl_(f"""
v_add_u32 v52, s29, v52
s_add_u32 s34, s34, 1
s_cmp_lt_u32 s34, 16
s_cbranch_scc1 L_sl_loop
v_mov_b32 v50, v48
v_mov_b32 v51, v49
s_nop 1
v_permlane32_swap_b32 v48, v50
v_permlane32_swap_b32 v49, v51
s_nop 1
v_max_f32 v48, v48, v50
v_max_f32 v49, v49, v51
v_sub_f32 v48, 0, v48
v_sub_f32 v49, 0, v49
""")
    sl_(firstreads)
    sl_("s_branch L_nosync")
    for e in check(sl_.lines + sl_.lines, "slow"): print(e)
    a.lines += sl_.lines
    a("L_codeend:")
    return a

DOC = '''; ---------------------------------------------------------------------------------------------
; ---------------------------------------------------------------------------------------------
'''

def build():
    k = gen()
    name = NAME + "_kernel"
    head = open("cdna_kernels/%s.s.ref" % NAME).read().split("; Override launch")[0]
    out = head + "; @launch grid=(256,1,1) block=(512,1,1) lds=163840\n"
    out += '.amdgcn_target "amdgcn-amd-amdhsa--gfx950"\n' + DOC + '.text\n' + k.text()
    out += f""".section .rodata,"a"
.p2align 6
.amdhsa_kernel {name}
  .amdhsa_next_free_vgpr 256
  .amdhsa_next_free_sgpr 102
  .amdhsa_accum_offset 256
  .amdhsa_group_segment_fixed_size 0
  .amdhsa_kernarg_size 112
  .amdhsa_user_sgpr_count 2
  .amdhsa_user_sgpr_kernarg_segment_ptr 1
  .amdhsa_system_sgpr_workgroup_id_x 1
.end_amdhsa_kernel
"""
    return out

def emit(fn, **kw):
    saved = {k: getattr(P, k) for k in kw}
    for k, v in kw.items(): setattr(P, k, v)
    open(fn, "w").write(build())
    for k, v in saved.items(): setattr(P, k, v)

if __name__ == "__main__":
    B = "bench/"
    emit(B+"v48.s")
    emit(B+"v48_f2.s", fc=2)
    emit(B+"v48_f2p6.s", fc=2, pi=6)
    emit(B+"v48_pre_t.s", timing="pre")
```
